```python
import torch

def _softmax(x, axis=-1):
    return torch.softmax(x, dim=axis)
def _gelu(x):
    return torch.nn.functional.gelu(x, approximate="tanh")
def _silu(x):
    return torch.nn.functional.silu(x)
def _sigmoid(x):
    return torch.sigmoid(x)
def _layernorm(x, axis=-1, eps=1e-5):
    m = x.mean(dim=axis, keepdim=True)
    v = x.var(dim=axis, keepdim=True, unbiased=False)
    return (x - m) / torch.sqrt(v + eps)
def _scatter_add(tgt, idx, src, axis=0):
    return tgt.clone().index_add_(axis, idx, src)
def _segment_sum(src, seg, n):
    out = torch.zeros((n,) + src.shape[1:], dtype=src.dtype)
    return out.index_add_(0, seg, src)
def _pad(x, pw):
    flat = tuple(v for pair in reversed(pw) for v in pair)
    return torch.nn.functional.pad(x, flat)

kernel_name = 'gated_mix__sliding_block_cached__mixer_channel_mlp__decode'

def setup_inputs():

    _w = (lambda a: (lambda t: t.to(torch.bfloat16) if t.is_floating_point() else t)(torch.as_tensor(a)))
    def _A_setup():
        B, Sq, D = 8, 1, 576
        Hq, Hkv, Sk, Dh = 32, 16, 8192, 128
        assert Hq % Hkv == 0, (Hq, Hkv)
        return {
            "x": _w((lambda *s: torch.randn(*s, dtype=torch.bfloat16) * 0.05)(B, Sq, D)),
            "k_cache": _w((lambda *s: torch.randn(*s, dtype=torch.bfloat16) * 6.4)(B, Hkv, Sk, Dh)),
            "v_cache": _w((lambda *s: torch.randn(*s, dtype=torch.bfloat16) * 0.4)(B, Hkv, Sk, Dh)),
            "wq": _w((lambda *s: torch.randn(*s, dtype=torch.bfloat16) * 6.4)(D, Hq * Dh) * (D ** -0.5)),
            "wo": _w((lambda *s: torch.randn(*s, dtype=torch.bfloat16) * 0.4)(Hq * Dh, D) * ((Hq * Dh) ** -0.5)),
        }
    _A_in = _A_setup()

    def _B_setup():
        B, S, D, F = 8, 1, 576, 4608
        return {
            "x": _w((lambda *s: torch.randn(*s, dtype=torch.bfloat16) * 0.05)(B, S, D)),
            "w1": _w((lambda *s: torch.randn(*s, dtype=torch.bfloat16) * 0.8)(D, F) * (D ** -0.5)),
            "b1": _w((lambda *s: torch.randn(*s, dtype=torch.bfloat16) * 0.8)(F)),
            "w2": _w((lambda *s: torch.randn(*s, dtype=torch.bfloat16) * 0.05)(F, D) * (F ** -0.5)),
            "b2": _w((lambda *s: torch.randn(*s, dtype=torch.bfloat16) * 0.05)(D)),
        }
    _B_in = _B_setup()

    return {
        "A_x": _A_in["x"],
        "A_k_cache": _A_in["k_cache"],
        "A_v_cache": _A_in["v_cache"],
        "A_wq": _A_in["wq"],
        "A_wo": _A_in["wo"],
        "B_x": _B_in["x"],
        "B_w1": _B_in["w1"],
        "B_b1": _B_in["b1"],
        "B_w2": _B_in["w2"],
        "B_b2": _B_in["b2"],
        "gate_w": _w((lambda *s: torch.randn(*s, dtype=torch.bfloat16) * 0.05)(576) * 16.0),
    }

def reference(A_x, A_k_cache, A_v_cache, A_wq, A_wo, B_x, B_w1, B_b1, B_w2, B_b2, gate_w):
    def _A_ref(x, k_cache, v_cache, wq, wo):
        B, Sq, D = x.shape
        Hq, Dh = 32, 128
        Hkv, Sk = k_cache.shape[1], k_cache.shape[2]
        W = min(4096, max(256, Sk // 4))
        rep = Hq // Hkv
        q = (lambda x, *d: x.permute(*d))((x @ wq).reshape(B, Sq, Hq, Dh), 0, 2, 1, 3)
        k = (lambda x, n, axis: torch.repeat_interleave(x, n, dim=axis))(k_cache[:, :, Sk - W:, :], rep, axis=1)
        v = (lambda x, n, axis: torch.repeat_interleave(x, n, dim=axis))(v_cache[:, :, Sk - W:, :], rep, axis=1)
        scores = torch.einsum("bhqd,bhkd->bhqk", q, k) * (Dh ** -0.5)
        p = _softmax(scores, axis=-1)
        o = torch.einsum("bhqk,bhkd->bhqd", p, v)
        return (lambda x, *d: x.permute(*d))(o, 0, 2, 1, 3).reshape(B, Sq, Hq * Dh) @ wo

    def _B_ref(x, w1, b1, w2, b2):
        y = _layernorm(x, axis=-1)
        h = _gelu(torch.einsum("bsd,df->bsf", y, w1) + b1)
        return torch.einsum("bsf,fd->bsd", h, w2) + b2

    x = A_x
    g = _sigmoid((x * gate_w).sum(-1, keepdims=True))
    a = _A_ref(x, A_k_cache, A_v_cache, A_wq, A_wo)
    b = _B_ref(x, B_w1, B_b1, B_w2, B_b2)
    return g * a + (1 - g) * b
```

```python
import sys
NAME = "gated_mix__sliding_block_cached__mixer_channel_mlp__decode_kernel"

E_OFF = 0x0
Q_OFF = 0x01000
QROW = 4096*4 + 256
H_OFF = 0x30000
HROW = 4608*4 + 256
Y_OFF = 0x60000
PA_OFF = 0x90000
SLOT = 2560 + 8192
PK = 2560
WS_BYTES = PA_OFF + 256 * SLOT
L_P = 0
L_DUM = 8 * 2304
L_U = 0
L_LN = 24576
L_O = 25088
L_ST = 29184
L_SY = 29312
LDS_BYTES = 29440
SPIN_MAX = 200000
CONS0 = 184
NT = 40

class G:
    def __init__(s, cfg):
        s.L = []; s.vm = []; s.cfg = cfg; s.nlab = 0
    def e(s, t): s.L.append("    " + t)
    def lab(s, t): s.L.append(t + ":")
    def newlab(s, p): s.nlab += 1; return f"L_{p}_{s.nlab}"
    def nop(s, n): s.e(f"s_nop {n-1}")
    def issue(s, tag, txt, weight=1):
        s.e(txt); s.vm.append((tag, weight))
    def wait(s, tag):
        idx = [i for i, (t, _) in enumerate(s.vm) if t == tag]
        if not idx: return False
        i = idx[-1]
        n = sum(w for _, w in s.vm[i+1:])
        s.e(f"s_waitcnt vmcnt({min(n,63)})")
        s.vm = s.vm[i+1:]
        return True
    def pace(s, d):
        tot = sum(w for _, w in s.vm)
        if d and tot >= d:
            s.e(f"s_waitcnt vmcnt({d-1})")
            while sum(w for _, w in s.vm) > d - 1: s.vm.pop(0)
    def drain(s): s.e("s_waitcnt vmcnt(0)"); s.vm = []
    def stamp(s, k):
        if s.cfg.get("stamps"): s.e(f"s_memrealtime s[{80+2*k}:{81+2*k}]")
    def prio(s, p): s.e(f"s_setprio {p}")

def q(r): return f"v[{r}:{r+3}]"
KB = 48
XB = 176
def woreg(i):
    return XB + 4*i if i < 20 else KB + 4*(i-20)

def rows_red(g, op, r, t):
    for sw in ("v_permlane16_swap_b32", "v_permlane32_swap_b32"):
        g.e(f"v_mov_b32 v{t}, v{r}"); g.nop(2); g.e(f"{sw} v{t}, v{r}"); g.nop(1); g.e(f"{op} v{r}, v{r}, v{t}")
def dpp_red(g, op, r, ctrl):
    g.nop(2); g.e(f"{op}_dpp v{r}, v{r}, v{r} {ctrl} row_mask:0xf bank_mask:0xf")
def poll(g, regs, loads, tmp, name, mask):
    top = g.newlab(name + "_top"); ok = g.newlab(name + "_ok")
    g.e(f"s_mov_b32 s47, {SPIN_MAX}")
    g.lab(top)
    for t in loads: g.e(t)
    g.drain()
    if mask is None:
        g.e(f"v_xor_b32 v{tmp}, v{regs[0]}, v{regs[1]}")
        g.e(f"v_bitop3_b32 v{tmp}, v{tmp}, v{regs[2]}, v{regs[3]} bitop3:0x96")
        g.e(f"v_cmp_ne_u32 vcc, s{NT}, v{tmp}")
    else:
        for i, r in enumerate(regs):
            if i == 0: g.e(f"v_xor_b32 v{tmp}, s{NT}, v{r}")
            else: g.e(f"v_bitop3_b32 v{tmp}, v{r}, s{NT+(i&3)}, v{tmp} bitop3:0xbe")
        g.e(f"v_and_b32 v{tmp}, {mask:#x}, v{tmp}")
        g.e(f"v_cmp_ne_u32 vcc, 0, v{tmp}")
    g.e("s_sub_u32 s47, s47, 1"); g.e(f"s_cbranch_scc1 {ok}")
    g.nop(3)
    g.e(f"s_cbranch_vccnz {top}")
    g.lab(ok)
def get_nonce(g, tmp):
    lds_wait(g, 0, 1, tmp, "go")
    g.e(f"ds_read_b32 v{tmp}, v7 offset:{L_SY+20}")
    g.e("s_waitcnt lgkmcnt(0)")
    g.e(f"v_readfirstlane_b32 s{NT}, v{tmp}")
    g.nop(1)
    rot_nonce(g)
def rot_nonce(g):
    for i in (1, 2, 3):
        g.e(f"s_lshr_b32 s{NT+i}, s{NT}, {8*i}"); g.e(f"s_lshl_b32 s46, s{NT}, {32-8*i}"); g.e(f"s_or_b32 s{NT+i}, s{NT+i}, s46")
def lds_wait(g, off, target, tmp, name):
    top = g.newlab(name + "_top"); ok = g.newlab(name + "_ok")
    g.e(f"s_mov_b32 s47, {SPIN_MAX*16}")
    g.lab(top)
    g.e(f"ds_read_b32 v{tmp}, v7 offset:{L_SY+off}")
    g.e("s_waitcnt lgkmcnt(0)")
    g.e(f"v_readfirstlane_b32 s46, v{tmp}")
    g.e("s_sub_u32 s47, s47, 1"); g.e(f"s_cbranch_scc1 {ok}")
    g.e(f"s_cmp_ge_u32 s46, {target}"); g.e(f"s_cbranch_scc1 {ok}")
    g.e("s_sleep 1")
    g.e(f"s_branch {top}")
    g.lab(ok)
def lds_signal(g, off, tmp):
    g.e(f"v_mov_b32 v{tmp}, 1")
    g.e("s_mov_b64 exec, 1")
    g.e(f"ds_add_u32 v7, v{tmp} offset:{L_SY+off}")
    g.e("s_mov_b64 exec, -1")
def srd(g, base, nrec):
    g.e(f"s_mov_b32 s{base+2}, {nrec:#x}"); g.e(f"s_mov_b32 s{base+3}, 0x20000")

def unit(g, role):
    stride = {"Q": 8192, "H": 9216, "Y": 1152}[role]
    g.lab(f"L_unit_{role}")
    g.vm = []
    ko = {"Q": 24, "H": 48, "Y": 64}[role]
    g.e(f"s_load_dwordx2 s[20:21], s[0:1], {ko}"); srd(g, 20, {"Q": 576*4096*2, "H": 576*4608*2, "Y": 4608*576*2}[role])
    if role == "H": g.e("s_load_dwordx2 s[36:37], s[0:1], 56"); srd(g, 36, 4608*2)
    g.e("s_sub_u32 s53, s44, 4")
    g.e(f"s_mul_i32 s46, s53, {192*stride}"); g.e("s_add_u32 s46, s46, s52")
    g.e("v_lshrrev_b32 v6, 3, v1"); g.e("v_and_b32 v8, 7, v1")
    g.e(f"v_mul_u32_u24 v5, {8*stride}, v6"); g.e("v_lshl_add_u32 v5, v8, 4, v5")
    g.e(f"v_mul_u32_u24 v4, {HROW if role=='Y' else 1152}, v8"); g.e(f"v_lshl_add_u32 v4, v6, {5 if role=='Y' else 4}, v4")
    g.e(f"s_mul_i32 s50, s53, {768 if role=='Y' else 384}")
    if role == "Y": g.e("s_add_u32 s50, s50, s51")
    g.e("s_waitcnt lgkmcnt(0)")
    XO = 144
    if role != "Y":
        for s in range(3): g.issue(f"X{s}", f"buffer_load_dwordx4 {q(XO+4*s)}, v4, s[24:27], s50 offen offset:{128*s} nt")
    if role == "H":
        g.e("v_lshlrev_b32 v9, 1, v1")
        g.issue("B1", "buffer_load_ushort v10, v9, s[36:39], s52 offen nt")
    for s in range(3):
        for i in range(8):
            g.issue(f"U{s}_{i}", f"buffer_load_dwordx4 {q(KB+32*s+4*i)}, v5, s[20:23], s46 offen nt")
            if (s, i) != (2, 7): g.e(f"s_add_u32 s46, s46, {stride if i < 7 else 57*stride}")
            if 8*s+i+1 == g.cfg["U0"]: g.e("s_barrier")
    g.stamp(1)
    if role == "H":
        g.wait("X2")
        for i in range(12):
            g.e(f"v_lshlrev_b32 v{16+2*i}, 16, v{XO+i}"); g.e(f"v_and_b32 v{17+2*i}, 0xffff0000, v{XO+i}")
        g.e("v_add_f32 v40, v16, v17"); g.e("v_mul_f32 v41, v16, v16"); g.e("v_fmac_f32 v41, v17, v17")
        for i in range(2, 24):
            g.e(f"v_add_f32 v40, v40, v{16+i}"); g.e(f"v_fmac_f32 v41, v{16+i}, v{16+i}")
        for r in (40, 41):
            dpp_red(g, "v_add_f32", r, "row_ror:8"); rows_red(g, "v_add_f32", r, 42)
        g.e("v_lshlrev_b32 v42, 3, v8"); g.e("s_lshl_b32 s46, s53, 6"); g.e("v_add_u32 v43, s46, v42")
        g.e("s_mov_b64 exec, 0xff"); g.e(f"ds_write_b64 v43, v[40:41] offset:{L_LN}"); g.e("s_mov_b64 exec, -1")
        lds_signal(g, 4, 44)
        lds_wait(g, 4, 3, 44, "ln")
        for i in range(3): g.e(f"ds_read_b64 v[{XB+2*i}:{XB+2*i+1}], v42 offset:{L_LN+64*i}")
        g.e("s_waitcnt lgkmcnt(0)")
        for k in (0, 1):
            g.e(f"v_add_f32 v{40+k}, v{XB+k}, v{XB+2+k}"); g.e(f"v_add_f32 v{40+k}, v{40+k}, v{XB+4+k}")
            g.e(f"v_mul_f32 v{40+k}, 0x3ae38e39, v{40+k}")
        g.e("v_fma_f32 v41, -v40, v40, v41"); g.e("v_max_f32 v41, 0, v41"); g.e("v_add_f32 v41, 0x3727c5ac, v41"); g.e("v_rsq_f32 v41, v41")
        for i in range(24): g.e(f"v_sub_f32 v{16+i}, v{16+i}, v40")
        for i in range(24): g.e(f"v_mul_f32 v{16+i}, v{16+i}, v41")
        for i in range(12): g.e(f"v_cvt_pk_bf16_f32 v{XO+i}, v{16+2*i}, v{17+2*i}")
    get_nonce(g, 44)
    g.e("s_mov_b32 s48, 0x05040100"); g.e("s_mov_b32 s49, 0x07060302")
    if role == "Y":
        poll(g, list(range(16, 40)), [f"buffer_load_dwordx4 {q(16+4*k)}, v4, s[12:15], s50 offen offset:{256*(k>>1)+16*(k&1)} sc1" for k in range(6)], 44, "hp", 0xffff)
        for i in range(12): g.e(f"v_perm_b32 v{XO+i}, v{17+2*i}, v{16+2*i}, s49")
    for s in range(3):
        g.wait(f"U{s}_7")
        wb = KB + 32*s
        for c in range(8):
            qd, e_ = c >> 1, c & 1
            tb = XB + 4*(c & 3)
            for k in range(4): g.e(f"v_perm_b32 v{tb+k}, v{wb+4*(2*k+1)+qd}, v{wb+4*(2*k)+qd}, s{48+e_}")
            g.nop(2)
            acc = 16 + 4*c
            g.e(f"v_mfma_f32_16x16x32_bf16 {q(acc)}, {q(tb)}, {q(XO+4*s)}, {'0' if s == 0 else q(acc)}")
    g.e("v_lshrrev_b32 v5, 5, v1"); g.e("v_mul_u32_u24 v5, 2176, v5")
    g.e("v_mul_u32_u24 v6, 272, v8"); g.e("v_add_u32 v5, v5, v6")
    g.e("v_and_b32 v6, 16, v1"); g.e("v_add_u32 v5, v5, v6")
    g.e("s_mul_i32 s46, s53, 4352"); g.e("v_add_u32 v5, s46, v5")
    g.e("s_mov_b32 exec_lo, 0x00ff00ff"); g.e("s_mov_b32 exec_hi, 0xff00ff00")
    for c in range(8): g.e(f"ds_write_b128 v5, {q(16+4*c)} offset:{L_U + c*32}")
    lds_signal(g, 8, 6)
    g.e("v_lshlrev_b32 v5, 5, v8"); g.e("v_lshrrev_b32 v6, 3, v1"); g.e("v_lshl_add_u32 v5, v6, 2, v5")
    g.e("s_mul_i32 s46, s53, 272"); g.e("v_add_u32 v5, s46, v5")
    rb = {"Q": QROW, "H": HROW, "Y": 8*2304}[role]
    g.e(f"s_mul_i32 s50, s53, {rb}"); g.e("s_add_u32 s50, s50, s45")
    g.e("v_lshlrev_b32 v9, 2, v1")
    if role == "H": g.e("v_lshlrev_b32 v10, 16, v10")
    g.e("v_and_b32 v11, 3, v1"); g.e("v_lshlrev_b32 v11, 3, v11"); g.e(f"v_mov_b32 v12, s{NT}"); g.e("v_alignbit_b32 v11, v12, v12, v11")
    g.e(f"s_mov_b32 s49, {0xff if role=='Y' else 0xffff:#x}")
    lds_wait(g, 8, 3, 6, "uc")
    top = g.newlab("ured")
    g.lab(top)
    for k in range(6): g.e(f"ds_read_b32 v{16+k}, v5 offset:{L_U + k*2176}")
    g.e("s_waitcnt lgkmcnt(0)")
    g.e("v_add_f32 v16, v16, v17"); g.e("v_add_f32 v18, v18, v19"); g.e("v_add_f32 v20, v20, v21")
    g.e("v_add_f32 v16, v16, v18"); g.e("v_add_f32 v16, v16, v20")
    if role == "H":
        g.e("v_add_f32 v16, v16, v10")
        g.e("v_mul_f32 v17, v16, v16"); g.e("v_mov_b32 v18, 0x3d372713"); g.e("v_fma_f32 v17, v17, v18, 1.0")
        g.e("v_mul_f32 v17, v17, v16"); g.e("v_mul_f32 v17, 0xc0135761, v17")
        g.e("v_exp_f32 v17, v17"); g.nop(1); g.e("v_add_f32 v17, 1.0, v17"); g.e("v_rcp_f32 v17, v17"); g.nop(1)
        g.e("v_mul_f32 v16, v16, v17")
    if role != "Y": g.e("v_cvt_pk_bf16_f32 v16, v16, v16")
    g.e("v_bfi_b32 v22, s49, v11, v16")
    g.e("buffer_store_dword v22, v9, s[12:15], s50 offen sc1")
    g.e(f"v_add_u32 v5, {3*272}, v5"); g.e(f"s_add_u32 s50, s50, {3*rb}")
    g.e("s_add_u32 s53, s53, 3"); g.e("s_cmp_lt_u32 s53, 8"); g.e(f"s_cbranch_scc1 {top}")
    g.stamp(2)
    g.e("s_branch L_attn")

def control(g):
    g.lab("L_ctrl")
    g.vm = []
    g.e("s_load_dwordx2 s[28:29], s[0:1], 96"); srd(g, 28, 256)
    g.e("s_load_dwordx2 s[36:37], s[0:1], 80"); srd(g, 36, 576*2)
    g.e("s_load_dwordx2 s[20:21], s[0:1], 72"); srd(g, 20, 576*2)
    g.e("s_load_dwordx2 s[32:33], s[0:1], 88"); srd(g, 32, 4608*2)
    for i in range(8): g.e(f"v_mov_b32 v{24+i}, 0")
    g.e(f"ds_write_b128 v7, v[24:27] offset:{L_SY}"); g.e(f"ds_write_b128 v7, v[24:27] offset:{L_SY+16}")
    g.e("v_lshlrev_b32 v12, 4, v1")
    g.e("s_waitcnt lgkmcnt(0)")
    sk = g.newlab("nolead")
    g.e(f"s_cmp_lg_u32 s2, {g.cfg['LEAD']}"); g.e(f"s_cbranch_scc1 {sk}")
    g.e(f"s_load_dword s46, s[12:13], {E_OFF}")
    g.e("s_waitcnt lgkmcnt(0)")
    g.e("s_add_u32 s46, s46, 0x01010101")
    g.e("v_mov_b32 v8, s46"); g.e("v_mov_b32 v9, 1")
    g.e("s_mov_b64 exec, 1")
    g.e("buffer_store_dwordx2 v[8:9], v7, s[28:31], 0 offen sc1")
    g.e(f"buffer_store_dword v8, v7, s[12:15], 0 offen offset:{E_OFF} sc1")
    g.e("s_mov_b64 exec, -1")
    g.lab(sk)
    g.e("s_barrier")
    g.stamp(1)
    top = g.newlab("ftop"); ok = g.newlab("fok")
    g.e(f"s_mov_b32 s47, {SPIN_MAX}")
    g.e("s_mov_b64 exec, 1")
    g.lab(top)
    g.e("buffer_load_dwordx2 v[8:9], v7, s[28:31], 0 offen sc1"); g.drain()
    g.e("v_cmp_ne_u32 vcc, 1, v9")
    g.e("s_sub_u32 s47, s47, 1"); g.e(f"s_cbranch_scc1 {ok}")
    g.nop(3)
    g.e(f"s_cbranch_vccnz {top}")
    g.lab(ok)
    g.e(f"ds_write_b32 v7, v8 offset:{L_SY+20}")
    g.e("s_mov_b64 exec, -1")
    lds_signal(g, 0, 5)
    g.stamp(2)
    sk = g.newlab("nogate")
    g.e(f"s_cmp_lt_u32 s2, {CONS0}"); g.e(f"s_cbranch_scc1 {sk}")
    g.e("s_and_b32 s55, s2, 7"); g.e("s_lshr_b32 s56, s2, 3"); g.e(f"s_sub_u32 s56, s56, {CONS0//8}")
    g.e("s_mul_i32 s46, s55, 1152")
    g.e("buffer_load_dwordx4 v[16:19], v12, s[24:27], s46 offen nt")
    g.e("buffer_load_dwordx4 v[20:23], v12, s[36:39], 0 offen nt")
    g.e("s_mov_b64 exec, 0xff")
    g.e("buffer_load_dwordx4 v[24:27], v12, s[24:27], s46 offen offset:1024 nt")
    g.e("buffer_load_dwordx4 v[28:31], v12, s[36:39], 0 offen offset:1024 nt")
    g.e("s_mov_b64 exec, -1")
    g.drain()
    g.e("v_mov_b32 v32, 0")
    for i in (16, 17, 18, 19, 24, 25, 26, 27):
        g.e(f"v_lshlrev_b32 v33, 16, v{i}"); g.e(f"v_lshlrev_b32 v34, 16, v{i+4}"); g.e("v_fmac_f32 v32, v33, v34")
        g.e(f"v_and_b32 v33, 0xffff0000, v{i}"); g.e(f"v_and_b32 v34, 0xffff0000, v{i+4}"); g.e("v_fmac_f32 v32, v33, v34")
    for r in (8, 4, 2, 1): dpp_red(g, "v_add_f32", 32, f"row_ror:{r}")
    rows_red(g, "v_add_f32", 32, 33)
    g.e("v_mul_f32 v32, 0xbfb8aa3b, v32"); g.e("v_exp_f32 v32, v32"); g.nop(1); g.e("v_add_f32 v32, 1.0, v32"); g.e("v_rcp_f32 v32, v32"); g.nop(1)
    g.e("v_readfirstlane_b32 s57, v32")
    g.lab(sk)
    g.e("s_branch L_attn")

def gen(cfg):
    g = G(cfg); L = g.L
    L.append(f"; @launch grid=(256,1,1) block=(512,1,1) lds={LDS_BYTES}")
    L.append('.amdgcn_target "amdgcn-amd-amdhsa--gfx950"')
    L.append(".text"); L.append(f".globl {NAME}"); L.append(".p2align 8"); L.append(f".type {NAME},@function"); g.lab(NAME)
    g.stamp(0)
    g.e("s_cmp_ge_u32 s2, 256"); g.e("s_cbranch_scc1 L_end")
    g.e("s_load_dwordx2 s[4:5], s[0:1], 8")
    g.e("s_load_dwordx2 s[8:9], s[0:1], 16")
    g.e("s_load_dwordx2 s[12:13], s[0:1], 104")
    g.e("s_load_dwordx2 s[16:17], s[0:1], 32")
    g.e("s_load_dwordx2 s[24:25], s[0:1], 0")
    g.e("v_lshrrev_b32 v5, 6, v0"); g.e("v_and_b32 v1, 63, v0"); g.e("v_mov_b32 v7, 0")
    srd(g, 4, 0x10000000); srd(g, 8, 0x10000000); srd(g, 12, WS_BYTES); srd(g, 16, 4096*576*2); srd(g, 24, 8*576*2)
    g.e("v_readfirstlane_b32 s44, v5")
    g.e("s_and_b32 s60, s2, 7"); g.e("s_lshl_b32 s60, s60, 1"); g.e("s_bfe_u32 s61, s2, 0x10004"); g.e("s_add_u32 s60, s60, s61")
    g.e("s_lshr_b32 s61, s2, 5")
    g.e("s_bfe_u32 s62, s2, 0x10003")
    g.e("s_lshl_b32 s64, s61, 4"); g.e("s_add_u32 s64, s64, s60"); g.e("s_lshl_b32 s63, s64, 1"); g.e("s_lshl_b32 s64, s64, 21")
    g.e("s_lshl_b32 s65, s62, 18"); g.e("s_add_u32 s64, s64, s65"); g.e("s_add_u32 s64, s64, 0x180000")
    g.e("s_lshl_b32 s65, s44, 12"); g.e("s_add_u32 s64, s64, s65")
    for j in range(1, 8): g.e(f"s_add_u32 s{64+j}, s{63+j}, 0x8000")
    g.e("s_add_u32 s63, s63, s62"); g.e(f"s_mul_i32 s74, s63, {SLOT}"); g.e(f"s_add_u32 s74, s74, {PA_OFF}")
    g.e("v_bfe_u32 v2, v1, 2, 2"); g.e("v_lshlrev_b32 v2, 8, v2"); g.e("v_lshrrev_b32 v5, 4, v1"); g.e("v_lshl_add_u32 v2, v5, 6, v2")
    g.e("v_and_b32 v5, 3, v1"); g.e("v_lshl_add_u32 v2, v5, 4, v2")
    def ktxt(t): return f"buffer_load_dwordx4 {q(KB+4*t)}, v2, s[4:7], s{64+(t>>2)} offen offset:{(t&3)*1024} nt"
    g.e("s_cmp_ge_u32 s44, 4"); g.e("s_cbranch_scc1 L_yng0")
    g.prio(cfg["PK"])
    g.e("s_waitcnt lgkmcnt(0)")
    for t in range(cfg["K0"]): g.e(ktxt(t))
    g.stamp(1)
    g.e("s_barrier")
    g.stamp(2)
    g.e("s_branch L_attn2")
    g.lab("L_yng0")
    g.prio(3)
    lq, lh, ly, lc = "L_rq", "L_rh", "L_ry", "L_rc"
    g.e("s_cmp_eq_u32 s44, 7"); g.e("s_cbranch_scc1 L_ctrl")
    g.e("s_and_b32 s48, s2, 7"); g.e("s_lshr_b32 s49, s2, 3")
    g.e("s_cmp_lt_u32 s2, 64"); g.e(f"s_cbranch_scc1 {lq}")
    g.e("s_cmp_lt_u32 s2, 136"); g.e(f"s_cbranch_scc1 {lh}")
    g.e("s_cmp_lt_u32 s2, 208"); g.e(f"s_cbranch_scc1 {ly}")
    g.e("s_waitcnt lgkmcnt(0)"); g.e("s_barrier"); g.stamp(1); g.stamp(2)
    g.e("s_branch L_attn")
    g.lab(lq)
    g.e("s_lshl_b32 s52, s48, 3"); g.e("s_add_u32 s52, s52, s49"); g.e("s_lshl_b32 s45, s52, 8"); g.e("s_lshl_b32 s52, s52, 7"); g.e(f"s_add_u32 s45, s45, {Q_OFF}")
    g.e("s_branch L_unit_Q")
    g.lab(lh)
    g.e("s_mul_i32 s52, s48, 9"); g.e("s_add_u32 s52, s52, s49"); g.e("s_sub_u32 s52, s52, 8"); g.e("s_lshl_b32 s45, s52, 8"); g.e("s_lshl_b32 s52, s52, 7"); g.e(f"s_add_u32 s45, s45, {H_OFF}")
    g.e("s_branch L_unit_H")
    g.lab(ly)
    g.e("s_sub_u32 s49, s49, 17")
    g.e(f"s_mul_i32 s52, s48, {576*1152}"); g.e("s_lshl_b32 s45, s49, 7"); g.e("s_add_u32 s52, s52, s45")
    g.e("s_mul_i32 s45, s48, 2304"); g.e("s_lshl_b32 s49, s49, 8"); g.e("s_add_u32 s45, s45, s49"); g.e(f"s_add_u32 s45, s45, {Y_OFF}")
    g.e("s_mul_i32 s51, s48, 2304"); g.e(f"s_add_u32 s51, s51, {H_OFF}")
    g.e("s_branch L_unit_Y")
    for role in "QHY": unit(g, role)
    control(g)
    g.lab("L_attn")
    g.vm = []
    g.prio(cfg["PK"])
    for t in range(32):
        if t == cfg["K0"]: g.lab("L_attn2")
        g.pace(cfg["DK"])
        g.issue(f"K{t}", ktxt(t))
    g.stamp(3)
    g.prio(3)
    g.e("v_and_b32 v5, 1, v1"); g.e("v_lshlrev_b32 v5, 4, v5"); g.e("v_mov_b32 v6, 0xffff"); g.e("v_lshlrev_b32 v5, v5, v6")
    g.e("v_bfe_u32 v6, v1, 1, 2")
    for i in range(4):
        g.e(f"v_cmp_eq_u32 vcc, {i}, v6"); g.nop(2); g.e(f"v_cndmask_b32 v{8+i}, 0, v5, vcc")
    g.e("v_bfe_u32 v40, v1, 3, 1"); g.e("v_lshlrev_b32 v40, 9, v40"); g.e("v_lshrrev_b32 v41, 4, v1"); g.e("v_lshl_add_u32 v40, v41, 7, v40")
    g.e("v_and_b32 v41, 3, v1"); g.e("v_lshl_add_u32 v40, v41, 5, v40")
    g.e("v_bfe_i32 v42, v1, 2, 1")
    g.e(f"s_mul_i32 s75, s61, {QROW}"); g.e("s_lshl_b32 s46, s60, 10"); g.e("s_add_u32 s75, s75, s46"); g.e(f"s_add_u32 s75, s75, {Q_OFF}")
    get_nonce(g, 41)
    poll(g, list(range(16, 24)), [f"buffer_load_dwordx4 {q(16+4*k)}, v40, s[12:15], s75 offen offset:{16*k} sc1" for k in range(2)], 41, "qp", 0xffff)
    g.e("s_mov_b32 s49, 0x07060302")
    for i in range(4): g.e(f"v_perm_b32 v{12+i}, v{17+2*i}, v{16+2*i}, s49")
    g.stamp(4)
    for i in range(4):
        g.e(f"v_bfi_b32 v{32+i}, v42, 0, v{12+i}"); g.e(f"v_and_b32 v{36+i}, v42, v{12+i}")
    g.nop(2)
    DB = XB
    def dsum(pr):
        d = DB + 4*(pr & 3)
        g.e(f"v_mov_b32_dpp v{16+pr}, v{d} quad_perm:[0,0,0,0] row_mask:0xf bank_mask:0xf")
        for c in (1, 2, 3):
            g.e(f"v_add_f32_dpp v{16+pr}, v{d+c}, v{16+pr} quad_perm:[{c},{c},{c},{c}] row_mask:0xf bank_mask:0xf")
    for pr in range(16):
        d = DB + 4*(pr & 3)
        g.e(f"v_mfma_f32_16x16x32_bf16 {q(d)}, {q(KB+8*pr)}, v[32:35], 0")
        g.e(f"v_mfma_f32_16x16x32_bf16 {q(d)}, {q(KB+8*pr+4)}, v[36:39], {q(d)}")
        if pr >= 2: dsum(pr-2)
        else: g.nop(4)
    g.nop(4); dsum(14); g.nop(2); dsum(15)
    g.e("v_max3_f32 v44, v16, v17, v18")
    for i in range(19, 31, 2): g.e(f"v_max3_f32 v44, v44, v{i}, v{i+1}")
    g.e("v_max_f32 v44, v44, v31")
    dpp_red(g, "v_max_f32", 44, "row_half_mirror"); rows_red(g, "v_max_f32", 44, 41)
    g.e("s_mov_b32 s46, 0x3e0293ee")
    g.e("v_mul_f32 v44, s46, v44")
    for i in range(16): g.e(f"v_fma_f32 v{16+i}, v{16+i}, s46, -v44")
    for i in range(16): g.e(f"v_exp_f32 v{16+i}, v{16+i}")
    g.e("v_add_f32 v45, v16, v17")
    for i in range(2, 16): g.e(f"v_add_f32 v45, v45, v{16+i}")
    for i in range(8): g.e(f"v_cvt_pk_bf16_f32 v{32+i}, v{16+2*i}, v{17+2*i}")
    dpp_red(g, "v_add_f32", 45, "row_half_mirror"); rows_red(g, "v_add_f32", 45, 41)
    g.e("v_and_b32 v41, 1, v1"); g.e("v_cmp_eq_u32 vcc, 1, v41"); g.e("v_and_b32 v41, 2, v1"); g.e("v_cmp_eq_u32 s[48:49], 2, v41"); g.nop(2)
    g.e("v_cndmask_b32 v32, v32, v34, vcc"); g.e("v_cndmask_b32 v33, v33, v35, vcc")
    g.e("v_cndmask_b32 v36, v36, v38, vcc"); g.e("v_cndmask_b32 v37, v37, v39, vcc")
    g.e("v_cndmask_b32 v34, v44, v45, vcc")
    g.e("v_cndmask_b32 v32, v32, v36, s[48:49]"); g.e("v_cndmask_b32 v33, v33, v37, s[48:49]")
    g.e(f"v_xor_b32 v35, s{NT}, v34"); g.e("v_bitop3_b32 v35, v35, v32, v33 bitop3:0x96")
    g.e("v_lshlrev_b32 v40, 4, v1")
    g.e("s_lshl_b32 s76, s44, 10"); g.e("s_add_u32 s46, s76, s74")
    g.issue("PKS", f"buffer_store_dwordx4 v[32:35], v40, s[12:15], s46 offen offset:{PK} sc1")
    for i in range(16): g.e(f"v_cvt_pk_bf16_f32 v{16+i}, v{16+i}, v{16+i}")
    g.e("s_xor_b32 s46, s63, 1"); g.e(f"s_mul_i32 s46, s46, {SLOT}"); g.e("s_add_u32 s76, s76, s46"); g.e(f"s_add_u32 s76, s76, {PA_OFF}")
    g.stamp(5)
    g.e("v_lshrrev_b32 v5, 3, v1"); g.e("v_mul_u32_u24 v4, 4608, v5"); g.e("v_and_b32 v5, 7, v1"); g.e("v_lshl_add_u32 v4, v5, 4, v4")
    g.e("s_lshl_b32 s72, s60, 1"); g.e("s_lshr_b32 s46, s44, 1"); g.e("s_add_u32 s72, s72, s46"); g.e("s_lshl_b32 s72, s72, 1"); g.e("s_add_u32 s72, s72, s62")
    g.e("s_lshl_b32 s72, s72, 1"); g.e("s_and_b32 s46, s44, 1"); g.e("s_add_u32 s72, s72, s46"); g.e(f"s_mul_i32 s72, s72, {32*1152}"); g.e("s_add_u32 s73, s72, 2304")
    def wotxt(i):
        cb, t = i >> 2, i & 3
        return f"buffer_load_dwordx4 {q(woreg(i))}, v4, s[16:19], s{72+(t>>1)} offen offset:{(t&1)*1152+cb*128} nt"
    sk = g.newlab("now1")
    g.e("s_cmp_ge_u32 s44, 4"); g.e(f"s_cbranch_scc1 {sk}")
    for i in range(20):
        g.pace(cfg["DW"]); g.issue(f"W{i}", wotxt(i))
    g.lab(sk)
    sk = g.newlab("noprep")
    g.e("s_cmp_lg_u32 s44, 7"); g.e(f"s_cbranch_scc1 {sk}")
    g.e(f"s_cmp_lt_u32 s2, {CONS0}"); g.e(f"s_cbranch_scc1 {sk}")
    g.e("v_lshrrev_b32 v5, 4, v1"); g.e("v_and_b32 v6, 15, v1")
    g.e("v_mul_u32_u24 v3, 2304, v5"); g.e("v_lshl_add_u32 v3, v6, 4, v3")
    g.e("v_lshlrev_b32 v247, 3, v6")
    g.e("s_lshl_b32 s46, s56, 8")
    g.e(f"s_mul_i32 s72, s55, {8*2304}"); g.e("s_add_u32 s72, s72, s46"); g.e(f"s_add_u32 s72, s72, {Y_OFF}"); g.e(f"s_add_u32 s73, s72, {4*2304}")
    g.e("s_lshl_b32 s77, s56, 7")
    g.e("buffer_load_dwordx2 v[248:249], v247, s[20:23], s77 offen nt")
    poll(g, list(range(232, 240)), [f"buffer_load_dwordx4 {q(232+4*j)}, v3, s[12:15], s{72+j} offen sc1" for j in range(2)], 5, "mp", 0xff)
    g.e("v_mov_b32 v244, s57"); g.e("v_sub_f32 v244, 1.0, v244")
    g.e("v_lshlrev_b32 v240, 16, v248"); g.e("v_and_b32 v241, 0xffff0000, v248"); g.e("v_lshlrev_b32 v242, 16, v249"); g.e("v_and_b32 v243, 0xffff0000, v249")
    for i in range(4): g.e(f"v_add_f32 v{232+i}, v{232+i}, v{236+i}")
    for i in range(4): rows_red(g, "v_add_f32", 232+i, 236)
    for i in range(4): g.e(f"v_add_f32 v{240+i}, v{240+i}, v{232+i}"); g.e(f"v_mul_f32 v{240+i}, v{240+i}, v244")
    g.e("s_mul_i32 s46, s55, 1152"); g.e("s_add_u32 s77, s77, s46")
    g.lab(sk)
    poll(g, [12, 13, 14, 15], [f"buffer_load_dwordx4 v[12:15], v40, s[12:15], s76 offen offset:{PK} sc1"], 41, "pk", None)
    g.stamp(6)
    g.e("v_bfe_u32 v3, v1, 3, 1"); g.e("v_lshlrev_b32 v3, 10, v3"); g.e("v_lshrrev_b32 v5, 4, v1"); g.e("v_lshl_add_u32 v3, v5, 8, v3")
    g.e("v_and_b32 v5, 7, v1"); g.e("v_lshl_add_u32 v3, v5, 4, v3"); g.e("s_lshl_b32 s46, s62, 7"); g.e("v_add_u32 v3, s46, v3")
    g.prio(cfg["PV"])
    def vload(t):
        pr = t & 15
        if t == 16:
            for j in range(8): g.e(f"s_xor_b32 s{64+j}, s{64+j}, 0x40000")
        g.issue(f"V{t}", f"buffer_load_dwordx4 {q(KB+4*t)}, v3, s[8:11], s{64+(pr>>1)} offen offset:{(pr&1)*2048} nt")
    g.e("v_mov_b32_dpp v46, v14 quad_perm:[0,0,0,0] row_mask:0xf bank_mask:0xf")
    g.e("v_mov_b32_dpp v47, v14 quad_perm:[1,1,1,1] row_mask:0xf bank_mask:0xf")
    g.e("v_max_f32 v40, v44, v46")
    g.e("v_sub_f32 v42, v44, v40"); g.e("v_sub_f32 v43, v46, v40"); g.e("v_exp_f32 v42, v42"); g.e("v_exp_f32 v43, v43"); g.nop(1)
    g.e("v_mul_f32 v41, v45, v42"); g.e("v_fmac_f32 v41, v47, v43")
    g.e("s_lshl_b32 s46, s44, 4"); g.e("v_add_u32 v5, s46, v1")
    g.e("s_mov_b64 exec, 0x101"); g.e(f"ds_write_b64 v5, v[40:41] offset:{L_ST}"); g.e("s_mov_b64 exec, -1")
    lds_signal(g, 12, 5)
    g.e("v_readlane_b32 s58, v44, 0"); g.e("v_readlane_b32 s59, v44, 8"); g.e("v_readlane_b32 s78, v46, 0"); g.e("v_readlane_b32 s79, v46, 8")
    g.e("s_mov_b32 s48, 0x01000100"); g.e("s_mov_b32 s49, 0x03020302")
    AH = cfg["AH"]
    nv = 0
    while nv < AH: vload(nv); nv += 1
    def factors():
        lds_wait(g, 12, 8, 5, "st")
        g.e("v_and_b32 v5, 7, v1"); g.e("v_lshlrev_b32 v5, 4, v5"); g.e("v_lshrrev_b32 v6, 5, v1"); g.e("v_lshl_add_u32 v5, v6, 3, v5")
        g.e(f"ds_read_b64 v[0:1+0]".replace("[0:1+0]", "[14:15]") + f", v5 offset:{L_ST}")
        g.e("s_waitcnt lgkmcnt(0)")
        g.e("v_mov_b32 v5, v14")
        for c in ("row_half_mirror", "quad_perm:[1,0,3,2]", "quad_perm:[2,3,0,1]"): dpp_red(g, "v_max_f32", 5, c)
        g.e("v_sub_f32 v14, v14, v5"); g.e("v_exp_f32 v14, v14"); g.nop(1); g.e("v_mul_f32 v15, v15, v14")
        for c in ("row_half_mirror", "quad_perm:[1,0,3,2]", "quad_perm:[2,3,0,1]"): dpp_red(g, "v_add_f32", 15, c)
        g.e("v_rcp_f32 v15, v15")
        g.e("v_cmp_gt_u32 vcc, 32, v1")
        g.e("v_mov_b32 v6, s58"); g.e("v_mov_b32 v14, s59"); g.e("v_cndmask_b32 v6, v14, v6, vcc")
        g.e("v_mov_b32 v12, s78"); g.e("v_mov_b32 v14, s79"); g.e("v_cndmask_b32 v14, v14, v12, vcc")
        g.e("v_sub_f32 v6, v6, v5"); g.e("v_sub_f32 v14, v14, v5"); g.e("v_exp_f32 v6, v6"); g.e("v_exp_f32 v14, v14"); g.nop(1)
        g.e("v_mul_f32 v6, v6, v15"); g.e("v_mul_f32 v2, v14, v15")
    for t in range(32):
        pr = t & 15
        if t == 16:
            g.nop(8)
            for u in range(4):
                for k in range(2):
                    g.e(f"v_mov_b32_dpp v5, v{12+k} quad_perm:[{u},{u},{u},{u}] row_mask:0xf bank_mask:0xf")
                    g.e(f"v_perm_b32 v{16+4*u+2*k}, v5, v5, s48"); g.e(f"v_perm_b32 v{17+4*u+2*k}, v5, v5, s49")
            factors()
            for i in range(4): g.e(f"v_add_f32_dpp v{12+i}, v{44+i}, v{40+i} row_ror:8 row_mask:0xf bank_mask:0xf")
            for i in range(4): g.e(f"v_mul_f32 v{12+i}, v{12+i}, v6")
            g.e("v_lshrrev_b32 v5, 5, v1"); g.e("v_lshlrev_b32 v5, 8, v5"); g.e("v_and_b32 v6, 7, v1"); g.e("v_lshl_add_u32 v5, v6, 5, v5")
            g.e("v_and_b32 v6, 16, v1"); g.e("v_add_u32 v5, v5, v6"); g.e("s_lshl_b32 s46, s44, 9"); g.e("v_add_u32 v5, s46, v5")
        for par in range(2):
            a = 32 + 4*par
            for i in range(4):
                own = (i < 2) == (par == 0)
                if own: g.e(f"v_and_b32 v{a+i}, v{16+pr}, v{8+i}")
                else: g.e(f"v_and_b32_dpp v{a+i}, v{16+pr}, v{8+i} row_half_mirror row_mask:0xf bank_mask:0xf")
        if not g.wait(f"V{t}"): g.nop(1)
        for par in range(2):
            acc = 40 + 4*par
            g.e(f"v_mfma_f32_16x16x32_bf16 {q(acc)}, {q(32+4*par)}, {q(KB+4*t)}, {'0' if pr==0 else q(acc)}")
        if nv < 32: vload(nv); nv += 1
    g.stamp(7)
    g.prio(3)
    g.nop(8)
    for i in range(4): g.e(f"v_add_f32_dpp v{40+i}, v{44+i}, v{40+i} row_ror:8 row_mask:0xf bank_mask:0xf")
    for i in range(4): g.e(f"v_fmac_f32 v{12+i}, v{40+i}, v2")
    g.e("s_mov_b32 exec_lo, 0x00ff00ff"); g.e("s_mov_b32 exec_hi, 0x00ff00ff")
    g.e(f"ds_write_b128 v5, v[12:15] offset:{L_O}")
    g.e("s_mov_b64 exec, -1")
    g.e("s_cmp_ge_u32 s44, 4"); g.e("s_cbranch_scc1 L_young")
    lds_signal(g, 16, 6)
    g.vm = []
    for i in range(20, 36):
        g.pace(cfg["DW"]); g.issue(f"W{i}", wotxt(i))
    g.e("v_lshrrev_b32 v6, 3, v1"); g.e("v_lshlrev_b32 v6, 4, v6"); g.e("s_lshl_b32 s46, s44, 7"); g.e("v_add_u32 v6, s46, v6")
    lds_wait(g, 16, 4, 5, "oc")
    R = 112
    for j in range(4): g.e(f"ds_read_b128 {q(R+4*j)}, v6 offset:{L_O+512*j}")
    g.e("v_lshrrev_b32 v5, 5, v1"); g.e("v_bfe_u32 v2, v1, 3, 1"); g.e("v_cmp_eq_u32 vcc, v5, v2")
    g.e("s_lshl_b32 s46, s44, 1"); g.e("v_add_u32 v5, s46, v5"); g.e("v_cndmask_b32 v5, 8, v5, vcc")
    g.e("v_mul_u32_u24 v5, 2304, v5"); g.e("v_and_b32 v2, 7, v1"); g.e("v_lshl_add_u32 v5, v2, 5, v5"); g.e("v_and_b32 v2, 16, v1"); g.e("v_add_u32 v5, v5, v2")
    g.e("s_waitcnt lgkmcnt(0)")
    for i in range(4):
        g.e(f"v_add_f32 v{R+i}, v{R+i}, v{R+4+i}"); g.e(f"v_add_f32 v{R+8+i}, v{R+8+i}, v{R+12+i}"); g.e(f"v_add_f32 v{12+i}, v{R+i}, v{R+8+i}")
    g.drain()
    g.e("s_barrier")
    g.stamp(8)
    for j in range(4): g.e(f"ds_read_b128 {q(R+4*j)}, v6 offset:{L_O+512*(4+j)}")
    g.e("s_waitcnt lgkmcnt(0)")
    for i in range(4):
        g.e(f"v_add_f32 v{R+i}, v{R+i}, v{R+4+i}"); g.e(f"v_add_f32 v{R+8+i}, v{R+8+i}, v{R+12+i}")
        g.e(f"v_add_f32 v{12+i}, v{12+i}, v{R+i}"); g.e(f"v_add_f32 v{12+i}, v{12+i}, v{R+8+i}")
    for t in range(4):
        g.e(f"v_cvt_pk_bf16_f32 v{12+t}, v{12+t}, v{12+t}")
        for i in range(4): g.e(f"v_and_b32 v{16+4*t+i}, v{12+t}, v{8+i}")
    g.nop(2)
    AC = 128
    for cb in range(9):
        for t in range(4):
            g.e(f"v_mfma_f32_16x16x32_bf16 {q(AC+4*cb)}, {q(16+4*t)}, {q(woreg(cb*4+t))}, {'0' if t==0 else q(AC+4*cb)}")
        if cb >= 2: g.e(f"ds_write_b128 v5, {q(AC+4*(cb-2))} offset:{L_P + (cb-2)*256}")
    g.nop(3)
    g.e(f"ds_write_b128 v5, {q(AC+4*7)} offset:{L_P + 7*256}")
    g.nop(3)
    g.e(f"ds_write_b128 v5, {q(AC+4*8)} offset:{L_P + 8*256}")
    g.e("s_waitcnt lgkmcnt(0)"); g.e("s_barrier")
    g.e("s_branch L_fin")
    g.lab("L_young")
    g.e("v_subrev_u32 v6, 256, v0"); g.e("v_lshlrev_b32 v6, 4, v6"); g.e("v_mov_b32 v5, 0xff")
    g.e("s_waitcnt lgkmcnt(0)"); g.e("s_barrier")
    g.stamp(8)
    g.e("s_cmp_eq_u32 s44, 7"); g.e("s_cbranch_scc1 L_cons")
    g.e("s_barrier")
    g.e("s_movk_i32 s46, 400"); g.e("v_cmp_gt_u32 vcc, s46, v0"); g.e("s_and_saveexec_b64 s[46:47], vcc")
    for j in range(8): g.e(f"ds_read_b128 {q(48+4*j)}, v6 offset:{L_P+2304*j}")
    g.e("s_waitcnt lgkmcnt(0)")
    for st in (4, 2, 1):
        for j in range(st):
            for i in range(4): g.e(f"v_add_f32 v{48+4*j+i}, v{48+4*j+i}, v{48+4*(st+j)+i}")
    for i in range(4): g.e(f"v_bfi_b32 v{48+i}, v5, s{NT+i}, v{48+i}")
    g.e("buffer_store_dwordx4 v[48:51], v6, s[12:15], s74 offen sc1")
    g.e("s_mov_b64 exec, -1")
    g.e("s_branch L_fin")
    g.lab("L_cons")
    g.e("v_lshrrev_b32 v5, 4, v1"); g.e("v_and_b32 v6, 15, v1")
    g.e(f"v_mul_u32_u24 v246, {SLOT}, v5"); g.e("v_lshl_add_u32 v246, v6, 4, v246")
    g.e("v_lshlrev_b32 v247, 3, v6")
    g.e(f"s_mul_i32 s64, s55, {32*SLOT}"); g.e("s_lshl_b32 s46, s56, 8"); g.e("s_add_u32 s64, s64, s46"); g.e(f"s_add_u32 s64, s64, {PA_OFF}")
    for j in range(1, 8): g.e(f"s_add_u32 s{64+j}, s{63+j}, {4*SLOT}")
    g.e("s_barrier")
    g.e(f"s_cmp_lt_u32 s2, {CONS0}"); g.e("s_cbranch_scc1 L_fin")
    poll(g, list(range(48, 80)), [f"buffer_load_dwordx4 {q(48+4*j)}, v246, s[12:15], s{64+j} offen sc1" for j in range(8)], 5, "fp", 0xff)
    for st in (4, 2, 1):
        for j in range(st):
            for i in range(4): g.e(f"v_add_f32 v{48+4*j+i}, v{48+4*j+i}, v{48+4*(st+j)+i}")
    for sw in ("v_permlane16_swap_b32", "v_permlane32_swap_b32"):
        for i in range(4): g.e(f"v_mov_b32 v{52+i}, v{48+i}")
        g.nop(1)
        for i in range(4): g.e(f"{sw} v{52+i}, v{48+i}")
        g.nop(1)
        for i in range(4): g.e(f"v_add_f32 v{48+i}, v{48+i}, v{52+i}")
    for i in range(4): g.e(f"v_fma_f32 v{48+i}, v{48+i}, s57, v{240+i}")
    g.e("v_cvt_pk_bf16_f32 v48, v48, v49"); g.e("v_cvt_pk_bf16_f32 v49, v50, v51")
    g.e("s_mov_b64 exec, 0xffff")
    g.e("buffer_store_dwordx2 v[48:49], v247, s[32:35], s77 offen")
    g.e("s_mov_b64 exec, -1")
    g.lab("L_fin")
    if cfg.get("stamps"):
        g.e("s_waitcnt vmcnt(0)")
        g.stamp(9)
        g.e("s_load_dwordx2 s[46:47], s[0:1], 104")
        g.e("s_waitcnt lgkmcnt(0)")
        g.e("s_add_u32 s46, s46, 0x20000000"); g.e("s_addc_u32 s47, s47, 0")
        g.e("s_lshl_b32 s48, s2, 3"); g.e("s_add_u32 s48, s48, s44"); g.e("s_mul_i32 s48, s48, 80"); g.e("v_mov_b32 v1, s48")
        for j in range(20): g.e(f"v_mov_b32 v{8+j}, s{80+j}")
        g.e("s_mov_b64 exec, 1")
        for j in range(5): g.e(f"global_store_dwordx4 v1, v[{8+4*j}:{11+4*j}], s[46:47] offset:{16*j}")
    g.lab("L_end")
    g.e("s_endpgm")
    L.append('.section .rodata,"a"'); L.append(".p2align 6"); L.append(f".amdhsa_kernel {NAME}")
    L.append("  .amdhsa_next_free_vgpr 256"); L.append("  .amdhsa_next_free_sgpr 102"); L.append("  .amdhsa_accum_offset 256")
    L.append("  .amdhsa_group_segment_fixed_size 0"); L.append("  .amdhsa_kernarg_size 112"); L.append("  .amdhsa_user_sgpr_count 2")
    L.append("  .amdhsa_user_sgpr_kernarg_segment_ptr 1"); L.append("  .amdhsa_system_sgpr_workgroup_id_x 1"); L.append(".end_amdhsa_kernel")
    return "\n".join(L) + "\n"

DEF = dict(LEAD=255, K0=4, U0=4, PK=2, PV=1, DK=0, DW=5, AH=14, stamps=0)
if __name__ == "__main__":
    import build
    out = sys.argv[1]
    cfg = dict(DEF)
    for a in sys.argv[2:]:
        k, v = a.split("="); cfg[k] = int(v)
    open(out, "w").write(gen(cfg))
    build.build(out)
```

```python
import sys
NAME = "gated_mix__sliding_block_cached__mixer_channel_mlp__decode_kernel"

E_OFF = 0x0
Q_OFF = 0x01000
QROW = 4096*4 + 256
H_OFF = 0x30000
HROW = 4608*4 + 256
Y_OFF = 0x60000
PA_OFF = 0x90000
PK = 2304
SLOT = 2304 + 768 + 256
WS_BYTES = PA_OFF + 256 * SLOT
L_P = 0
L_U = 0
L_LN = 16 * 2304
L_O = L_LN + 512
L_Y = L_O + 4608
L_Q = L_Y + 4096
L_ST = L_Q + 512
L_A = L_ST + 128
L_SY = L_A + 64
LDS_BYTES = L_SY + 64
WQ, WS_, WR = 1, 2, 3
SPIN_MAX = 100000
NT = 40
TB = 28

class G:
    def __init__(s, cfg):
        s.L = []; s.vm = []; s.cfg = cfg; s.nlab = 0
    def e(s, t): s.L.append("    " + t)
    def lab(s, t): s.L.append(t + ":")
    def newlab(s, p): s.nlab += 1; return f"L_{p}_{s.nlab}"
    def nop(s, n): s.e(f"s_nop {n-1}")
    def issue(s, tag, txt, weight=1):
        dg = s.cfg.get("DG", 0)
        if (dg & 1 and tag in ("UST", "STS", "PKS")) or (dg & 2 and tag in ("Q", "STL", "PKL", "HL", "ML")) or (dg & 4 and tag in ("X", "X9", "B1", "G")) or (dg & 16 and tag[0] == "W") or (dg & 64 and tag == "UST") or (dg & 128 and tag == "STS") or (dg & 256 and tag == "PKS"):
            s.vm.append((tag, 0)); return
        if tag in ("UST", "STS", "PKS"):
            if dg & 512: txt = txt.replace(" sc1", "")
            if dg & 1024: txt = txt.replace(" sc1", " sc1 nt")
            if dg & 2048: txt = txt.replace(" sc1", " sc0 sc1")
        s.e(txt); s.vm.append((tag, weight))
    def pending(s, tag): return any(t == tag for t, _ in s.vm)
    def wait(s, tag):
        idx = [i for i, (t, _) in enumerate(s.vm) if t == tag]
        if not idx: return False
        i = idx[-1]
        n = sum(w for _, w in s.vm[i+1:])
        s.e(f"s_waitcnt vmcnt({min(n,63)})")
        s.vm = s.vm[i+1:]
        return True
    def pace(s, d):
        tot = sum(w for _, w in s.vm)
        if d and tot >= d:
            s.e(f"s_waitcnt vmcnt({d-1})")
            while sum(w for _, w in s.vm) > d - 1: s.vm.pop(0)
    def stamp(s, k):
        if s.cfg.get("stamps") and not s.cfg.get("TS"): s.e(f"s_memrealtime s[{80+2*k}:{81+2*k}]")
    def tstamp(s, k):
        if s.cfg.get("stamps") and s.cfg.get("TS"): s.e(f"s_memtime s[{80+2*k}:{81+2*k}]")

class Load:
    def __init__(s, tag, emit, after=(), paced=True): s.tag, s.emit, s.after, s.paced = tag, emit, after, paced
class Chunk:
    def __init__(s, name, emit, needs=(), cost=100, gap=None): s.name, s.emit, s.needs, s.cost, s.gap = name, emit, needs, cost, gap

def schedule(g, loads, chunks, D, budget, flush=True, issued0=()):
    done = {}; issued = set(issued0); ci = 0
    def force():
        nonlocal ci
        c = chunks[ci]
        for t in c.needs:
            assert t in issued, (c.name, t)
            g.wait(t)
        if not (g.cfg.get("DG", 0) & 8 and c.name not in ("init", "addr", "setup", "sm3")): c.emit()
        done[c.name] = slot; ci += 1
    slot = 0
    for ld in loads:
        for a in ld.after:
            while a not in done: force()
        if ld.paced: g.pace(D)
        ld.emit(); issued.add(ld.tag)
        left = budget
        while ci < len(chunks) and left > 0:
            c = chunks[ci]
            if any(t not in issued or g.pending(t) for t in c.needs): break
            if c.gap and slot < done[c.gap[0]] + c.gap[1]: break
            force(); left -= c.cost
        slot += 1
    if flush:
        while ci < len(chunks): force()
    else:
        assert ci == len(chunks), ("chunks left at merge", [c.name for c in chunks[ci:]])
    if g.cfg.get("verbose"): print({k: v for k, v in done.items()}, "slots", slot)

def q(r): return f"v[{r}:{r+3}]"
KB = 48
SP = 176
US = SP; UW = 212; UT = 232; RAW = 248; DB = 232
WIN = {4: 0, 0: 2, 6: 4, 2: 6, 5: 8, 1: 10, 7: 12, 3: 14}
def vreg(t): return SP + 4*t if t < 14 else KB + 4*(t-14)
def wreg(i): return KB + 4*(18+i) if i < 14 else SP + 4*(i-14)

def rows_red(g, op, r, t):
    for sw in ("v_permlane16_swap_b32", "v_permlane32_swap_b32"):
        g.e(f"v_mov_b32 v{t}, v{r}"); g.nop(2); g.e(f"{sw} v{t}, v{r}"); g.nop(1); g.e(f"{op} v{r}, v{r}, v{t}")
def dpp_red(g, op, r, ctrl):
    g.nop(2); g.e(f"{op}_dpp v{r}, v{r}, v{r} {ctrl} row_mask:0xf bank_mask:0xf")
def check(g, regs, reloads, tmp, name, wide, extra=()):
    top = g.newlab(name + "_top"); ok = g.newlab(name + "_ok")
    g.e(f"s_mov_b32 s47, {0 if g.cfg.get('DG') else SPIN_MAX}")
    g.lab(top)
    if wide:
        for i, r in enumerate(regs):
            if i == 0: g.e(f"v_xor_b32 v{tmp}, s{NT}, v{r}")
            else: g.e(f"v_bitop3_b32 v{tmp}, v{r}, s{NT+(i&3)}, v{tmp} bitop3:0xbe")
        for r, tv in extra: g.e(f"v_bitop3_b32 v{tmp}, v{r}, v{tv}, v{tmp} bitop3:0xbe")
    else:
        for i, r in enumerate(regs): g.e(f"v_xor_b32 v{r}, s{TB+(i&3)}, v{r}")
        rs = list(regs)
        g.e(f"v_or_b32 v{tmp}, v{rs[0]}, v{rs[1]}"); rs = rs[2:]
        while rs: g.e(f"v_or3_b32 v{tmp}, v{tmp}, v{rs[0]}, v{rs[1]}"); rs = rs[2:]
    g.e(f"v_and_b32 v{tmp}, {0xffff if wide else 0xff:#x}, v{tmp}")
    g.e(f"v_cmp_ne_u32 vcc, 0, v{tmp}")
    g.e("s_sub_u32 s47, s47, 1"); g.e(f"s_cbranch_scc1 {ok}")
    g.nop(3)
    g.e(f"s_cbranch_vccz {ok}")
    if g.cfg.get("stamps"): g.e("s_add_u32 s100, s100, 1")
    for t in reloads: g.e(t)
    g.e("s_waitcnt vmcnt(0)")
    g.e(f"s_branch {top}")
    g.lab(ok)
def lds_wait(g, off, target, tmp, zero, name):
    top = g.newlab(name + "_top"); ok = g.newlab(name + "_ok")
    g.e(f"s_mov_b32 s47, {SPIN_MAX*16}")
    g.e(f"v_mov_b32 v{zero}, 0")
    g.lab(top)
    g.e(f"ds_read_b32 v{tmp}, v{zero} offset:{L_SY+off}")
    g.e("s_waitcnt lgkmcnt(0)")
    g.e(f"v_readfirstlane_b32 s46, v{tmp}")
    g.e("s_sub_u32 s47, s47, 1"); g.e(f"s_cbranch_scc1 {ok}")
    g.e(f"s_cmp_lt_u32 s46, {target}"); g.e(f"s_cbranch_scc1 {top}")
    g.lab(ok)
def lds_signal(g, off, t0, t1):
    g.e("s_mov_b64 exec, 1")
    g.e(f"v_mov_b32 v{t0}, 0"); g.e(f"v_mov_b32 v{t1}, 1")
    g.e(f"ds_add_u32 v{t0}, v{t1} offset:{L_SY+off}")
    g.e("s_mov_b64 exec, -1")
def srd(g, base, nrec):
    g.e(f"s_mov_b32 s{base+2}, {nrec:#x}"); g.e(f"s_mov_b32 s{base+3}, 0x20000")
def ktxt(t): return f"buffer_load_dwordx4 {q(KB+4*t)}, v2, s[4:7], s{64+(t>>2)} offen offset:{(t&3)*1024} nt"

def common_addr(g):
    g.e("v_bfe_u32 v3, v1, 3, 1"); g.e("v_lshlrev_b32 v3, 10, v3"); g.e("v_lshrrev_b32 v5, 4, v1"); g.e("v_lshl_add_u32 v3, v5, 8, v3")
    g.e("v_and_b32 v5, 7, v1"); g.e("v_lshl_add_u32 v3, v5, 4, v3"); g.e("s_xor_b32 s46, s62, 1"); g.e("s_lshl_b32 s46, s46, 7"); g.e("v_add_u32 v3, s46, v3")
QR = 44
QL = [f"buffer_load_dwordx4 {q(QR)}, v0, s[12:15], s75 offen sc1"]
def only(g, w, body):
    sk = g.newlab("only")
    g.e(f"s_cmp_lg_u32 s44, {w}"); g.e(f"s_cbranch_scc1 {sk}")
    body()
    g.lab(sk)

def shared_stream(g):
    cfg = g.cfg
    S = []
    for t in range(32):
        S.append(Load(f"K{t}", (lambda t=t: g.issue(f"K{t}", ktxt(t)))))
    def vl(t):
        pr = t & 15
        if t == 16: g.e("v_xor_b32 v3, 0x80, v3")
        g.issue(f"V{t}", f"buffer_load_dwordx4 {q(vreg(t))}, v3, s[8:11], s{64+(pr>>1)} offen offset:{(pr&1)*2048} nt")
    V = []
    for t in range(32):
        after = ("addr", "mm3") if t < 14 else (f"qk{(t-14)>>1}",)
        V.append(Load(f"V{t}", (lambda t=t: vl(t)), after=after))
    return S, V

def role_part(g, role):
    cfg = g.cfg; D = cfg["D"]
    g.lab(f"L_role_{role}")
    g.vm = []
    if role == "Q":
        stride = 8192
        g.e("s_load_dwordx2 s[20:21], s[0:1], 24"); srd(g, 20, 576*4096*2)
        g.e("s_lshl_b32 s52, s48, 3"); g.e("s_add_u32 s52, s52, s49"); g.e("s_lshl_b32 s45, s52, 8"); g.e("s_lshl_b32 s52, s52, 7"); g.e(f"s_add_u32 s45, s45, {Q_OFF}")
    if role == "H":
        stride = 9216
        g.e("s_load_dwordx2 s[20:21], s[0:1], 48"); srd(g, 20, 576*4608*2)
        g.e("s_load_dwordx2 s[36:37], s[0:1], 56"); srd(g, 36, 4608*2)
        g.e("s_mul_i32 s52, s48, 9"); g.e("s_add_u32 s52, s52, s49"); g.e("s_sub_u32 s52, s52, 8"); g.e("s_lshl_b32 s45, s52, 8"); g.e("s_lshl_b32 s52, s52, 7"); g.e(f"s_add_u32 s45, s45, {H_OFF}")
    if role == "Y":
        stride = 1152
        g.e("s_load_dwordx2 s[20:21], s[0:1], 64"); srd(g, 20, 4608*576*2)
        g.e("s_sub_u32 s49, s49, 17")
        g.e(f"s_mul_i32 s52, s48, {576*1152}"); g.e("s_lshl_b32 s45, s49, 7"); g.e("s_add_u32 s52, s52, s45")
        g.e("s_mul_i32 s51, s48, 2304"); g.e("s_lshl_b32 s49, s49, 8"); g.e("s_add_u32 s45, s51, s49"); g.e(f"s_add_u32 s45, s45, {Y_OFF}")
        g.e("s_mul_i32 s46, s44, 288"); g.e("s_add_u32 s51, s51, s46"); g.e(f"s_add_u32 s51, s51, {H_OFF}")
    if role == "C":
        g.e("s_load_dwordx2 s[36:37], s[0:1], 80"); srd(g, 36, 576*2)
        g.e("s_load_dwordx2 s[20:21], s[0:1], 72"); srd(g, 20, 576*2)
        g.e("s_load_dwordx2 s[32:33], s[0:1], 88"); srd(g, 32, 4608*2)
        g.e("s_sub_u32 s49, s49, 26"); g.e("s_lshl_b32 s52, s49, 3"); g.e("s_add_u32 s52, s52, s44"); g.e("s_mul_i32 s52, s52, 12288")
        g.e(f"s_mul_i32 s46, s48, {512*1152}"); g.e("s_add_u32 s52, s52, s46")
        g.e("s_lshl_b32 s56, s49, 1"); g.e("s_add_u32 s56, s56, s44"); g.e("s_sub_u32 s56, s56, 6"); g.e("s_mov_b32 s55, s48")
        g.e("s_cmp_lt_u32 s56, 9"); g.e("s_cselect_b32 s54, 1, 0"); g.e("s_cmp_ge_u32 s44, 6"); g.e("s_cselect_b32 s54, s54, 0")
    else:
        g.e("v_lshrrev_b32 v6, 3, v1"); g.e("v_and_b32 v7, 7, v1")
        g.e(f"v_mul_u32_u24 v14, {stride}, v6"); g.e("v_lshlrev_b32 v3, 3, v14"); g.e("v_lshl_add_u32 v3, v7, 4, v3"); g.e("v_lshl_add_u32 v14, v7, 4, v14")
        g.e(f"s_mul_i32 s53, s44, {72*stride}"); g.e("s_add_u32 s53, s53, s52")
        rowb = HROW if role == "Y" else 1152
        sh = 2 if role == "Y" else 1
        g.e(f"v_mul_u32_u24 v15, {rowb}, v7"); g.e(f"v_lshl_add_u32 v4, v6, {sh+3}, v15"); g.e(f"v_lshl_add_u32 v15, v6, {sh}, v15")
        g.e("s_mul_i32 s50, s44, 144")
        if role == "H": g.e("v_lshlrev_b32 v16, 1, v1")
    g.e("s_waitcnt lgkmcnt(0)")
    g.e(f"s_load_dword s{NT}, s[12:13], {E_OFF}")
    S, V = shared_stream(g)
    shared = (S + V)[:cfg["M"]]
    loads = []; chunks = []
    def qload():
        g.e(f"s_mul_i32 s75, s61, {QROW}"); g.e("s_lshl_b32 s46, s60, 10"); g.e("s_add_u32 s75, s75, s46"); g.e(f"s_add_u32 s75, s75, {Q_OFF}")
        g.issue("Q", QL[0], 0)
    def qchk():
        check(g, list(range(QR, QR+4)), QL, 43, "qp", True)
        g.e("s_mov_b32 s46, 0x07060302")
        g.e(f"v_perm_b32 v{QR}, v{QR+1}, v{QR}, s46"); g.e(f"v_perm_b32 v{QR+1}, v{QR+3}, v{QR+2}, s46")
        g.e("v_lshlrev_b32 v43, 3, v1")
        g.e(f"ds_write_b64 v43, v[{QR}:{QR+1}] offset:{L_Q}")
        lds_signal(g, 8, QR+2, QR+3)
    kq = cfg["KH"] if role == "Y" else cfg["KQ"]
    shared = shared[:kq] + [Load("Q", lambda: only(g, WQ, qload), after=(() if role in "YC" else ("urd",)), paced=False)] + shared[kq:]
    QC = Chunk("qchk", lambda: only(g, WQ, qchk), needs=("Q",), cost=100)
    def uload(i):
        g.issue(f"U{i}", f"buffer_load_dwordx4 {q(US+4*i)}, {'v3' if i < 8 else 'v14'}, s[20:23], s53 offen nt")
        if i < 8: g.e(f"s_add_u32 s53, s53, {stride if i < 7 else 57*stride}")
    U = [Load(f"U{i}", (lambda i=i: uload(i))) for i in range(9)]
    def c_init():
        g.e("s_waitcnt lgkmcnt(0)"); g.e("s_barrier")
        g.e(f"s_add_u32 s{NT}, s{NT}, 0x01010101")
        for i in (1, 2, 3):
            g.e(f"s_lshr_b32 s{NT+i}, s{NT}, {8*i}"); g.e(f"s_lshl_b32 s46, s{NT}, {32-8*i}"); g.e(f"s_or_b32 s{NT+i}, s{NT+i}, s46")
        for i in range(4): g.e(f"s_and_b32 s{TB+i}, s{NT+i}, 0xff")
    def touch():
        fl = " sc1" if cfg["PT"] & 4 else ""
        if role != "C" and cfg["PT"] & 1:
            rb = {"Q": QROW, "H": HROW, "Y": 8*2304}[role]
            g.e(f"s_mul_i32 s46, s44, {rb}"); g.e("s_add_u32 s46, s46, s45"); g.e("v_lshlrev_b32 v230, 2, v1")
            g.issue("T", f"buffer_load_dword v231, v230, s[12:15], s46 offen{fl}", 0)
        if cfg["PT"] & 2:
            def b():
                g.e("s_add_u32 s46, s63, s62"); g.e(f"s_mul_i32 s46, s46, {SLOT}"); g.e(f"s_add_u32 s46, s46, {PA_OFF}"); g.e("v_lshlrev_b32 v230, 6, v1")
                g.e("s_mov_b32 exec_hi, 0xffff")
                g.issue("T", f"buffer_load_dword v231, v230, s[12:15], s46 offen{fl}", 0)
                g.e("s_mov_b64 exec, -1")
            only(g, 4, b)
    if cfg["PT"]: loads.append(Load("T", touch, paced=False))
    chunks.append(Chunk("zero", lambda: None, cost=0))
    chunks.append(Chunk("init", c_init, cost=1000, gap=("zero", D-1)))
    if role in "QH":
        loads.append(Load("X", lambda: g.issue("X", "buffer_load_dwordx4 v[8:11], v4, s[24:27], s50 offen")))
        loads.append(Load("X9", lambda: g.issue("X9", "buffer_load_ushort v12, v15, s[24:27], s50 offen offset:128")))
        if role == "H": loads.append(Load("B1", lambda: g.issue("B1", "buffer_load_ushort v13, v16, s[36:39], s52 offen nt"), paced=False))
        loads += U + shared
    if role == "Y":
        hl = [f"buffer_load_dwordx4 {q(RAW)}, v4, s[12:15], s51 offen sc1", f"buffer_load_dwordx4 {q(RAW+4)}, v4, s[12:15], s51 offen offset:16 sc1",
              "buffer_load_dword v12, v15, s[12:15], s51 offen offset:256 sc1"]
        H = [Load("HL", (lambda t=t: g.issue("HL", t))) for t in hl]
        loads += U + shared[:cfg["KH"]+1] + H + shared[cfg["KH"]+1:]
    if role == "C":
        def gl():
            sk = g.newlab("gate")
            g.e("s_cmp_eq_u32 s54, 0"); g.e(f"s_cbranch_scc1 {sk}")
            for i in range(8): g.e(f"v_mov_b32 v{24+i}, 0")
            g.e("s_mul_i32 s46, s55, 1152")
            g.issue("G", "buffer_load_dwordx4 v[16:19], v0, s[24:27], s46 offen", 0)
            g.issue("G", "buffer_load_dwordx4 v[20:23], v0, s[36:39], 0 offen", 0)
            g.e("s_mov_b64 exec, 0xff")
            g.issue("G", "buffer_load_dwordx4 v[24:27], v0, s[24:27], s46 offen offset:1024", 0)
            g.issue("G", "buffer_load_dwordx4 v[28:31], v0, s[36:39], 0 offen offset:1024", 0)
            g.e("s_mov_b64 exec, -1")
            g.lab(sk)
        def pl(i):
            g.issue(f"P{i}", f"buffer_load_dwordx4 {q(US+4*i)}, v0, s[16:19], s52 offen offset:{(i&3)*1024}")
            if i & 3 == 3: g.e("s_add_u32 s52, s52, 4096")
        P = [Load(f"P{i}", (lambda i=i: pl(i))) for i in range(12)]
        loads += P[:D] + [Load("G", gl, paced=False)] + P[D:] + shared
        def gc():
            sk = g.newlab("gatec")
            g.e("s_cmp_eq_u32 s54, 0"); g.e(f"s_cbranch_scc1 {sk}")
            g.e("v_mov_b32 v32, 0")
            for i in (16, 17, 18, 19, 24, 25, 26, 27):
                g.e(f"v_lshlrev_b32 v33, 16, v{i}"); g.e(f"v_lshlrev_b32 v34, 16, v{i+4}"); g.e("v_fmac_f32 v32, v33, v34")
                g.e(f"v_and_b32 v33, 0xffff0000, v{i}"); g.e(f"v_and_b32 v34, 0xffff0000, v{i+4}"); g.e("v_fmac_f32 v32, v33, v34")
            for r in (8, 4, 2, 1): dpp_red(g, "v_add_f32", 32, f"row_ror:{r}")
            rows_red(g, "v_add_f32", 32, 33)
            g.e("v_mul_f32 v32, 0xbfb8aa3b, v32"); g.e("v_exp_f32 v32, v32"); g.nop(1); g.e("v_add_f32 v32, 1.0, v32"); g.e("v_rcp_f32 v32, v32"); g.nop(1)
            g.e("v_readfirstlane_b32 s57, v32")
            g.lab(sk)
            g.stamp(1); g.stamp(2)
        chunks.append(Chunk("gate", gc, needs=("G",), cost=400))
        chunks.append(Chunk("mm3", lambda: None, needs=("P11",), cost=0))
        chunks.append(Chunk("addr", lambda: common_addr(g), cost=80))
    if role == "H":
        def ln1():
            for i in range(4):
                g.e(f"v_lshlrev_b32 v{16+2*i}, 16, v{8+i}"); g.e(f"v_and_b32 v{17+2*i}, 0xffff0000, v{8+i}")
            g.e("v_lshlrev_b32 v24, 16, v12")
            g.e("v_add_f32 v40, v16, v17"); g.e("v_mul_f32 v41, v16, v16"); g.e("v_fmac_f32 v41, v17, v17")
            for i in range(2, 9):
                g.e(f"v_add_f32 v40, v40, v{16+i}"); g.e(f"v_fmac_f32 v41, v{16+i}, v{16+i}")
            for r in (40, 41):
                dpp_red(g, "v_add_f32", r, "row_ror:8"); rows_red(g, "v_add_f32", r, 42)
            g.e("v_lshlrev_b32 v42, 3, v7"); g.e("s_lshl_b32 s46, s44, 6"); g.e("v_add_u32 v43, s46, v42")
            g.e("s_mov_b64 exec, 0xff"); g.e(f"ds_write_b64 v43, v[40:41] offset:{L_LN}")
            lds_signal(g, 0, 44, 45)
        def ln2():
            lds_wait(g, 0, 8, 44, 45, "ln")
            for i in range(8): g.e(f"ds_read_b64 v[{UT+2*i}:{UT+2*i+1}], v42 offset:{L_LN+64*i}")
            g.e("s_waitcnt lgkmcnt(0)")
            for st in (4, 2, 1):
                for i in range(st):
                    for k in (0, 1): g.e(f"v_add_f32 v{UT+2*i+k}, v{UT+2*i+k}, v{UT+2*(st+i)+k}")
            g.e(f"v_mul_f32 v40, 0x3ae38e39, v{UT}"); g.e(f"v_mul_f32 v41, 0x3ae38e39, v{UT+1}")
            g.e("v_fma_f32 v41, -v40, v40, v41"); g.e("v_max_f32 v41, 0, v41"); g.e("v_add_f32 v41, 0x3727c5ac, v41"); g.e("v_rsq_f32 v41, v41")
            for i in range(9): g.e(f"v_sub_f32 v{16+i}, v{16+i}, v40")
            for i in range(9): g.e(f"v_mul_f32 v{16+i}, v{16+i}, v41")
            for i in range(4): g.e(f"v_cvt_pk_bf16_f32 v{8+i}, v{16+2*i}, v{17+2*i}")
            g.e("v_cvt_pk_bf16_f32 v12, v24, 0")
        chunks.append(Chunk("ln1", ln1, needs=("X9",), cost=300))
        chunks.append(Chunk("ln2", ln2, cost=400, gap=("ln1", cfg["GAP"])))
    if role == "Y":
        def hchk():
            g.stamp(1)
            g.e("v_and_b32 v13, 3, v6"); g.e("v_lshlrev_b32 v13, 3, v13"); g.e(f"v_mov_b32 v16, s{NT}"); g.e("v_alignbit_b32 v13, v16, v16, v13")
            check(g, list(range(RAW, RAW+8)), hl, 16, "hp", True, extra=[(12, 13)])
            g.e("s_mov_b32 s49, 0x07060302")
            for i in range(4): g.e(f"v_perm_b32 v{8+i}, v{RAW+1+2*i}, v{RAW+2*i}, s49")
            g.e("v_lshrrev_b32 v12, 16, v12")
        chunks.append(QC)
        chunks.append(Chunk("hchk", hchk, needs=("HL",), cost=120))
        chunks.append(Chunk("addr", lambda: common_addr(g), cost=80))
    if role != "C":
        def win():
            g.e("s_mov_b32 s48, 0x05040100"); g.e("s_mov_b32 s49, 0x07060302")
            for i in range(18):
                if i in (2, 7): g.e(f"v_mov_b32 v{UW+i}, v12")
                elif i in (10, 15): g.e(f"v_lshlrev_b32 v{UW+i}, 16, v12")
                else: g.e(f"v_mov_b32 v{UW+i}, 0")
        chunks.append(Chunk("win", win, needs=(("X9",) if role != "Y" else ()), cost=80))
        def mm(k):
            if k == 0 and role != "Y": g.stamp(1)
            for c in (2*k, 2*k+1):
                qd, e_ = c >> 1, c & 1
                tb = UT + 4*(c & 3)
                for j in range(4): g.e(f"v_perm_b32 v{tb+j}, v{US+4*(2*j+1)+qd}, v{US+4*(2*j)+qd}, s{48+e_}")
                acc = 16 + 4*c
                g.e(f"v_mfma_f32_16x16x32_bf16 {q(acc)}, {q(US+32)}, {q(UW+WIN[c])}, 0")
                g.nop(1)
                g.e(f"v_mfma_f32_16x16x32_bf16 {q(acc)}, {q(tb)}, v[8:11], {q(acc)}")
        for k in range(4): chunks.append(Chunk(f"mm{k}", (lambda k=k: mm(k)), needs=("U8",), cost=110))
        def uwr():
            g.e("v_lshrrev_b32 v5, 5, v1"); g.e("v_mul_u32_u24 v5, 2176, v5")
            g.e("v_mul_u32_u24 v8, 272, v7"); g.e("v_add_u32 v5, v5, v8")
            g.e("v_and_b32 v8, 16, v1"); g.e("v_add_u32 v5, v5, v8")
            g.e("s_mul_i32 s46, s44, 4352"); g.e("v_add_u32 v5, s46, v5")
            g.e("s_mov_b32 exec_lo, 0x00ff00ff"); g.e("s_mov_b32 exec_hi, 0xff00ff00")
            for c in range(8): g.e(f"ds_write_b128 v5, {q(16+4*c)} offset:{L_U + c*32}")
            lds_signal(g, 4, 8, 9)
        def urd():
            g.e("v_lshlrev_b32 v5, 5, v7"); g.e("v_lshl_add_u32 v5, v6, 2, v5")
            g.e("s_mul_i32 s46, s44, 272"); g.e("v_add_u32 v5, s46, v5")
            rb = {"Q": QROW, "H": HROW, "Y": 8*2304}[role]
            g.e(f"s_mul_i32 s50, s44, {rb}"); g.e("s_add_u32 s50, s50, s45")
            g.e("v_and_b32 v11, 3, v1"); g.e("v_lshlrev_b32 v11, 3, v11"); g.e(f"v_mov_b32 v12, s{NT}"); g.e("v_alignbit_b32 v11, v12, v12, v11")
            g.e(f"s_mov_b32 s49, {0xff if role=='Y' else 0xffff:#x}")
            lds_wait(g, 4, 8, 8, 9, "uc")
            for k in range(16): g.e(f"ds_read_b32 v{16+k}, v5 offset:{L_U + k*2176}")
            g.e("v_lshlrev_b32 v9, 2, v1")
            g.e("s_waitcnt lgkmcnt(0)")
            for st in (8, 4, 2, 1):
                for i in range(st): g.e(f"v_add_f32 v{16+i}, v{16+i}, v{16+st+i}")
            if role == "H":
                g.e("v_lshlrev_b32 v13, 16, v13")
                g.e("v_add_f32 v16, v16, v13")
                g.e("v_mul_f32 v17, v16, v16"); g.e("v_mov_b32 v18, 0x3d372713"); g.e("v_fma_f32 v17, v17, v18, 1.0")
                g.e("v_mul_f32 v17, v17, v16"); g.e("v_mul_f32 v17, 0xc0135761, v17")
                g.e("v_exp_f32 v17, v17"); g.nop(1); g.e("v_add_f32 v17, 1.0, v17"); g.e("v_rcp_f32 v17, v17"); g.nop(1)
                g.e("v_mul_f32 v16, v16, v17")
            if role != "Y": g.e("v_cvt_pk_bf16_f32 v16, v16, v16")
            g.e("v_bfi_b32 v14, s49, v11, v16")
            at = cfg["AT"]
            if at == 0: g.issue("UST", "buffer_store_dword v14, v9, s[12:15], s50 offen sc1", 0)
            if at == 1: g.issue("UST", "buffer_atomic_swap v14, v9, s[12:15], s50 offen", 0)
            if at == 2: g.issue("UST", "buffer_atomic_swap v14, v9, s[12:15], s50 offen sc1", 0)
            if at == 3:
                g.issue("UST", "buffer_store_dword v14, v9, s[12:15], s50 offen", 0)
                g.issue("UST", "buffer_wbl2 sc1", 0)
            g.stamp(2)
        chunks.append(Chunk("uwr", uwr, cost=200))
        chunks.append(Chunk("urd", urd, cost=500, gap=("uwr", cfg["GAP"])))
        if role != "Y": chunks.append(Chunk("addr", lambda: common_addr(g), cost=80))
    if role != "Y": chunks.append(QC)
    schedule(g, loads, chunks, D, cfg["BUD"], flush=False)
    g.e("s_branch L_common")
    return g.vm

def gen(cfg):
    g = G(cfg); L = g.L; D = cfg["D"]
    L.append(f"; @launch grid=(256,1,1) block=(512,1,1) lds={LDS_BYTES}")
    L.append('.amdgcn_target "amdgcn-amd-amdhsa--gfx950"')
    L.append(".text"); L.append(f".globl {NAME}"); L.append(".p2align 8"); L.append(f".type {NAME},@function"); g.lab(NAME)
    g.stamp(0)
    if cfg.get("stamps"): g.e("s_mov_b32 s100, 0")
    g.e("s_cmp_ge_u32 s2, 256"); g.e("s_cbranch_scc1 L_end")
    g.e("s_load_dwordx2 s[12:13], s[0:1], 104")
    g.e("s_load_dwordx2 s[4:5], s[0:1], 8")
    g.e("s_load_dwordx2 s[8:9], s[0:1], 16")
    g.e("s_load_dwordx2 s[16:17], s[0:1], 32")
    g.e("s_load_dwordx2 s[24:25], s[0:1], 0")
    g.e("v_lshrrev_b32 v5, 6, v0"); g.e("v_and_b32 v1, 63, v0"); g.e("v_mov_b32 v8, 0"); g.e("v_mov_b32 v9, 0"); g.e("v_mov_b32 v10, 0"); g.e("v_mov_b32 v11, 0"); g.e("v_lshlrev_b32 v0, 4, v1")
    srd(g, 4, 0x10000000); srd(g, 8, 0x10000000); srd(g, 12, WS_BYTES); srd(g, 16, 4096*576*2); srd(g, 24, 8*576*2)
    g.e("v_readfirstlane_b32 s44, v5")
    g.e(f"ds_write_b128 v8, v[8:11] offset:{L_SY}"); g.e(f"ds_write_b32 v8, v8 offset:{L_SY+16}")
    g.e("s_and_b32 s48, s2, 7"); g.e("s_lshr_b32 s49, s2, 3")
    g.e("s_lshl_b32 s60, s48, 1"); g.e("s_bfe_u32 s61, s2, 0x10004"); g.e("s_add_u32 s60, s60, s61")
    g.e("s_lshr_b32 s61, s2, 5")
    g.e("s_bfe_u32 s62, s2, 0x10003")
    g.e("s_lshl_b32 s64, s61, 4"); g.e("s_add_u32 s64, s64, s60"); g.e("s_lshl_b32 s63, s64, 1"); g.e("s_lshl_b32 s64, s64, 21")
    g.e("s_lshl_b32 s65, s62, 18"); g.e("s_add_u32 s64, s64, s65"); g.e("s_add_u32 s64, s64, 0x180000")
    g.e("s_lshl_b32 s65, s44, 12"); g.e("s_add_u32 s64, s64, s65")
    for j in range(1, 8): g.e(f"s_add_u32 s{64+j}, s{63+j}, 0x8000")
    g.e("v_bfe_u32 v2, v1, 2, 2"); g.e("v_lshlrev_b32 v2, 8, v2"); g.e("v_lshrrev_b32 v5, 4, v1"); g.e("v_lshl_add_u32 v2, v5, 6, v2")
    g.e("v_and_b32 v5, 3, v1"); g.e("v_lshl_add_u32 v2, v5, 4, v2")
    g.e("s_mov_b32 s54, 0")
    g.e("s_cmp_lt_u32 s2, 64"); g.e("s_cbranch_scc1 L_role_Q")
    g.e("s_cmp_lt_u32 s2, 136"); g.e("s_cbranch_scc1 L_role_H")
    g.e("s_cmp_lt_u32 s2, 208"); g.e("s_cbranch_scc1 L_role_Y")
    states = [[x for x in role_part(g, r) if x[1]] for r in "CQHY"]
    g.vm = max(states, key=len)
    for st in states: assert st == g.vm[len(g.vm)-len(st):], (st, g.vm)
    g.lab("L_common")
    g.stamp(3)
    S, V = shared_stream(g)
    allS = S + V
    issued0 = [l.tag for l in allS[:cfg["M"]]]
    rest = allS[cfg["M"]:]
    def wl(i): g.issue(f"W{i}", f"buffer_load_dwordx4 {q(wreg(i))}, v4, s[16:19], s72 offen offset:{(i&1)*1152+(i>>1)*128}")
    W = [Load(f"W{i}", (lambda i=i: wl(i)), after=((f"qk{(18+i)>>1}",) if i < 14 else (f"pv{i-14}",)), paced=not cfg["WB"]) for i in range(18)]
    pkl = f"buffer_load_dwordx4 v[12:15], v6, s[12:15], s77 offen offset:{PK} sc1"
    A = DB
    ml = [f"buffer_load_dwordx4 {q(A+4*j)}, v{A+12}, s[12:15], s{50+j} offen sc1" for j in range(2)]
    def mload():
        sk = g.newlab("noprep")
        g.e("s_cmp_eq_u32 s54, 0"); g.e(f"s_cbranch_scc1 {sk}")
        g.e(f"v_lshrrev_b32 v{A+12}, 4, v1"); g.e(f"v_and_b32 v{A+13}, 15, v1")
        g.e(f"v_mul_u32_u24 v{A+12}, 2304, v{A+12}"); g.e(f"v_lshl_add_u32 v{A+12}, v{A+13}, 4, v{A+12}"); g.e(f"v_lshlrev_b32 v{A+13}, 3, v{A+13}")
        g.e("s_lshl_b32 s46, s56, 8")
        g.e(f"s_mul_i32 s50, s55, {8*2304}"); g.e("s_add_u32 s50, s50, s46"); g.e(f"s_add_u32 s50, s50, {Y_OFF}"); g.e(f"s_add_u32 s51, s50, {4*2304}")
        g.e("s_lshl_b32 s53, s56, 7")
        g.issue("ML", f"buffer_load_dwordx2 v[{A+8}:{A+9}], v{A+13}, s[20:23], s53 offen", 0)
        for x in ml: g.issue("ML", x, 0)
        g.lab(sk)
    extra = {}
    wpos = cfg["WPOS"]
    for i in range(18): extra.setdefault(wpos(i), []).append(W[i])
    extra.setdefault(cfg["TML"], []).append(Load("ML", mload, after=("sm0",), paced=False))
    def pload():
        g.e("v_min_u32 v6, 512, v0".replace("512", "0x200"))
        g.issue("PKL", pkl, 0)
    extra.setdefault(cfg["TPL"], []).append(Load("PKL", lambda: only(g, WR, pload), after=("fold",), paced=False))
    loads = []
    for l in rest:
        loads.append(l)
        if l.tag[0] == "V": loads += extra.pop(int(l.tag[1:]), [])
    assert not extra, extra
    C = []
    C.append(Chunk("addr", lambda: None, cost=0)); C.append(Chunk("mm3", lambda: None, cost=0))
    def setup():
        g.e(f"s_mul_i32 s76, s63, {SLOT}"); g.e(f"s_add_u32 s76, s76, {PA_OFF}")
        g.e(f"s_mul_i32 s74, s62, {SLOT}"); g.e(f"s_sub_u32 s77, {SLOT}, s74"); g.e("s_add_u32 s74, s74, s76"); g.e("s_add_u32 s77, s77, s76")
        g.e("v_lshrrev_b32 v5, 3, v1"); g.e("v_mul_u32_u24 v4, 2304, v5"); g.e("v_and_b32 v5, 7, v1"); g.e("v_lshl_add_u32 v4, v5, 4, v4")
        g.e("s_lshl_b32 s72, s60, 1"); g.e("s_lshr_b32 s46, s44, 2"); g.e("s_add_u32 s72, s72, s46"); g.e("s_lshl_b32 s72, s72, 1"); g.e("s_add_u32 s72, s72, s62")
        g.e("s_lshl_b32 s72, s72, 2"); g.e("s_and_b32 s46, s44, 3"); g.e("s_add_u32 s72, s72, s46"); g.e(f"s_mul_i32 s72, s72, {16*1152}")
        g.e("v_and_b32 v5, 1, v1"); g.e("v_lshlrev_b32 v5, 4, v5"); g.e("v_mov_b32 v6, 0xffff"); g.e("v_lshlrev_b32 v5, v5, v6")
        g.e("v_bfe_u32 v6, v1, 1, 2")
        for i in range(4):
            g.e(f"v_cmp_eq_u32 vcc, {i}, v6"); g.nop(2); g.e(f"v_cndmask_b32 v{8+i}, 0, v5, vcc")
        g.e("v_bfe_i32 v42, v1, 2, 1"); g.e("v_mov_b32 v7, 0xff")
    C.append(Chunk("setup", setup, cost=150))
    def qrd():
        g.e("v_bfe_u32 v43, v1, 3, 1"); g.e("v_lshlrev_b32 v43, 8, v43"); g.e("v_lshrrev_b32 v5, 4, v1"); g.e("v_lshl_add_u32 v43, v5, 6, v43")
        g.e("v_and_b32 v5, 3, v1"); g.e("v_lshl_add_u32 v43, v5, 4, v43")
        lds_wait(g, 8, 1, 40, 41, "qc")
        g.e(f"ds_read_b128 v[44:47], v43 offset:{L_Q}")
        g.e("s_waitcnt lgkmcnt(0)")
        for i in range(4):
            g.e(f"v_bfi_b32 v{32+i}, v42, 0, v{44+i}"); g.e(f"v_and_b32 v{36+i}, v42, v{44+i}")
        g.nop(2)
        g.stamp(4)
    C.append(Chunk("qrd", qrd, cost=250))
    def dsum(pr):
        d = DB + 4*(pr & 3)
        g.e(f"v_mov_b32_dpp v{16+pr}, v{d} quad_perm:[0,0,0,0] row_mask:0xf bank_mask:0xf")
        for c in (1, 2, 3):
            g.e(f"v_add_f32_dpp v{16+pr}, v{d+c}, v{16+pr} quad_perm:[{c},{c},{c},{c}] row_mask:0xf bank_mask:0xf")
    def qk(pr):
        d = DB + 4*(pr & 3)
        g.e(f"v_mfma_f32_16x16x32_bf16 {q(d)}, {q(KB+8*pr)}, v[32:35], 0")
        g.e(f"v_mfma_f32_16x16x32_bf16 {q(d)}, {q(KB+8*pr+4)}, v[36:39], {q(d)}")
        if pr >= 2: dsum(pr-2)
        else: g.nop(4)
    for pr in range(16): C.append(Chunk(f"qk{pr}", (lambda pr=pr: qk(pr)), needs=(f"K{2*pr+1}",), cost=60))
    def sm0():
        g.nop(4); dsum(14); g.nop(2); dsum(15)
        g.e("v_max3_f32 v44, v16, v17, v18")
        for i in range(19, 31, 2): g.e(f"v_max3_f32 v44, v44, v{i}, v{i+1}")
        g.e("v_max_f32 v44, v44, v31")
        dpp_red(g, "v_max_f32", 44, "row_half_mirror"); rows_red(g, "v_max_f32", 44, 41)
        g.e("s_mov_b32 s46, 0x3e0293ee")
        g.e("v_mul_f32 v44, s46, v44")
    def sm1():
        g.e("s_mov_b32 s46, 0x3e0293ee")
        for i in range(16): g.e(f"v_fma_f32 v{16+i}, v{16+i}, s46, -v44")
        for i in range(16): g.e(f"v_exp_f32 v{16+i}, v{16+i}")
    def sm2():
        g.e("v_add_f32 v45, v16, v17")
        for i in range(2, 16): g.e(f"v_add_f32 v45, v45, v{16+i}")
        for i in range(16): g.e(f"v_cvt_pk_bf16_f32 v{16+i}, v{16+i}, v{16+i}")
        dpp_red(g, "v_add_f32", 45, "row_half_mirror"); rows_red(g, "v_add_f32", 45, 41)
    def sm3():
        g.e("v_readlane_b32 s58, v44, 0"); g.e("v_readlane_b32 s59, v44, 8")
        g.e("s_lshl_b32 s46, s44, 4"); g.e("v_add_u32 v5, s46, v1")
        g.e("s_mov_b64 exec, 0x101")
        g.e(f"ds_write_b64 v5, v[44:45] offset:{L_ST}")
        lds_signal(g, 12, 12, 13)
        g.e("v_lshrrev_b32 v5, 5, v1"); g.e("v_lshlrev_b32 v5, 8, v5"); g.e("v_and_b32 v6, 7, v1"); g.e("v_lshl_add_u32 v5, v6, 5, v5")
        g.e("v_and_b32 v6, 16, v1"); g.e("v_add_u32 v5, v5, v6"); g.e("s_lshl_b32 s46, s44, 9"); g.e("v_add_u32 v5, s46, v5")
        g.e("s_waitcnt lgkmcnt(0)")
        g.stamp(5)
    for n, f, c in (("sm0", sm0, 200), ("sm1", sm1, 200), ("sm2", sm2, 220), ("sm3", sm3, 90)): C.append(Chunk(n, f, cost=c))
    def pv(t):
        pr = t & 15
        for par in range(2):
            a = 32 + 4*par
            for i in range(4):
                own = (i < 2) == (par == 0)
                if own: g.e(f"v_and_b32 v{a+i}, v{16+pr}, v{8+i}")
                else: g.e(f"v_and_b32_dpp v{a+i}, v{16+pr}, v{8+i} row_half_mirror row_mask:0xf bank_mask:0xf")
        if not g.wait(f"V{t}"): g.nop(1)
        for par in range(2):
            acc = 40 + 4*par
            g.e(f"v_mfma_f32_16x16x32_bf16 {q(acc)}, {q(32+4*par)}, {q(vreg(t))}, {'0' if pr==0 else q(acc)}")
    def lfac():
        R = RAW + 4
        g.e(f"v_and_b32 v6, 7, v1"); g.e("v_lshlrev_b32 v6, 4, v6"); g.e(f"v_lshrrev_b32 v{R}, 5, v1"); g.e(f"v_lshl_add_u32 v6, v{R}, 3, v6")
        lds_wait(g, 12, 8, R, R+1, "sc")
        g.e(f"ds_read_b64 v[{R}:{R+1}], v6 offset:{L_ST}")
        g.e("s_waitcnt lgkmcnt(0)")
        g.e(f"v_mov_b32 v{R+2}, v{R}")
        red8 = ("row_half_mirror", "quad_perm:[1,0,3,2]", "quad_perm:[2,3,0,1]")
        for c in red8: dpp_red(g, "v_max_f32", R+2, c)
        g.e(f"v_and_b32 v{R+2}, 0xffffff00, v{R+2}")
        g.e(f"v_sub_f32 v{R}, v{R}, v{R+2}"); g.e(f"v_exp_f32 v{R}, v{R}"); g.nop(1); g.e(f"v_mul_f32 v{R+1}, v{R+1}, v{R}")
        for c in red8: dpp_red(g, "v_add_f32", R+1, c)
        g.e(f"v_and_b32 v{R+1}, 0xffffff00, v{R+1}")
        g.e("v_cmp_gt_u32 vcc, 32, v1")
        g.e(f"v_mov_b32 v{R}, s58"); g.e(f"v_mov_b32 v{R+3}, s59"); g.e(f"v_cndmask_b32 v{R}, v{R+3}, v{R}, vcc")
        g.e(f"v_sub_f32 v{R}, v{R}, v{R+2}"); g.e(f"v_exp_f32 v2, v{R}")
        g.e(f"v_readlane_b32 s58, v{R+2}, 0"); g.e(f"v_readlane_b32 s59, v{R+1}, 0"); g.e(f"v_readlane_b32 s78, v{R+2}, 32"); g.e(f"v_readlane_b32 s79, v{R+1}, 32")
    def fold():
        g.nop(8)
        for i in range(4): g.e(f"v_add_f32_dpp v{12+i}, v{44+i}, v{40+i} row_ror:8 row_mask:0xf bank_mask:0xf")
        for i in range(4): g.e(f"v_mul_f32 v{12+i}, v{12+i}, v2")
        g.e("s_mov_b32 exec_lo, 0x00ff00ff"); g.e("s_mov_b32 exec_hi, 0x00ff00ff")
        g.e(f"ds_write_b128 v5, v[12:15] offset:{L_Y}")
        lds_signal(g, 16, RAW+4, RAW+5)
        g.e("s_waitcnt lgkmcnt(0)")
    def send():
        g.e("v_and_b32 v6, 31, v1"); g.e("v_lshlrev_b32 v6, 4, v6"); g.e(f"v_lshrrev_b32 v12, 5, v1"); g.e("v_lshl_add_u32 v6, v12, 11, v6")
        lds_wait(g, 16, 8, 12, 13, "yc")
        for j in range(4): g.e(f"ds_read_b128 {q(A+4*j)}, v6 offset:{L_Y+512*j}")
        g.e("s_waitcnt lgkmcnt(0)")
        for i in range(4):
            g.e(f"v_add_f32 v{A+i}, v{A+i}, v{A+4+i}"); g.e(f"v_add_f32 v{A+8+i}, v{A+8+i}, v{A+12+i}"); g.e(f"v_add_f32 v{A+i}, v{A+i}, v{A+8+i}")
        for i in range(4): g.e(f"v_mov_b32 v{A+4+i}, v{A+i}")
        g.nop(1)
        for i in range(4): g.e(f"v_permlane32_swap_b32 v{A+4+i}, v{A+i}")
        g.nop(1)
        for i in range(4): g.e(f"v_add_f32 v{12+i}, v{A+i}, v{A+4+i}")
        for i, r in enumerate((58, 59, 78, 79)): g.e(f"v_writelane_b32 v{12+i}, s{r}, 32")
        for i in range(4): g.e(f"v_bfi_b32 v{12+i}, v7, s{TB+i}, v{12+i}")
        g.e(f"s_mov_b32 exec_hi, {0xff if cfg['FL'] else 1:#x}")
        g.issue("PKS", f"buffer_store_dwordx4 v[12:15], v0, s[12:15], s74 offen offset:{PK} sc1", 0)
        g.e("s_mov_b64 exec, -1")
    def recv():
        check(g, [12, 13, 14, 15], [pkl], A, "pk", False)
        for i in range(4): g.e(f"v_readlane_b32 s{48+i}, v{12+i}, 32")
        g.e("v_cmp_gt_u32 vcc, 16, v1")
        for k, (r0, r1) in enumerate(((58, 78), (59, 79), (48, 50), (49, 51))):
            g.e(f"v_mov_b32 v{A+4+k}, s{r0}"); g.e(f"v_mov_b32 v{A}, s{r1}"); g.e(f"v_cndmask_b32 v{A+4+k}, v{A}, v{A+4+k}, vcc")
        g.e(f"v_max_f32 v{A}, v{A+4}, v{A+6}")
        g.e(f"v_sub_f32 v{A+4}, v{A+4}, v{A}"); g.e(f"v_sub_f32 v{A+6}, v{A+6}, v{A}"); g.e(f"v_exp_f32 v{A+4}, v{A+4}"); g.e(f"v_exp_f32 v{A+6}, v{A+6}"); g.nop(1)
        g.e(f"v_mul_f32 v{A+5}, v{A+5}, v{A+4}"); g.e(f"v_fmac_f32 v{A+5}, v{A+7}, v{A+6}"); g.e(f"v_rcp_f32 v{A+5}, v{A+5}"); g.nop(1)
        g.e(f"v_mul_f32 v{A+4}, v{A+4}, v{A+5}"); g.e(f"v_mul_f32 v{A+6}, v{A+6}, v{A+5}")
        for i in range(4): g.e(f"v_mul_f32 v{12+i}, v{12+i}, v{A+6}")
        g.e(f"v_lshrrev_b32 v{A}, 2, v1")
        g.e("s_mov_b32 exec_hi, 0")
        g.e(f"ds_write_b128 v0, v[12:15] offset:{L_O+4096}")
        g.e("s_mov_b32 exec_lo, 0x00010001")
        g.e(f"ds_write_b32 v{A}, v{A+4} offset:{L_A}")
        g.e("s_mov_b64 exec, -1")
        g.e("s_waitcnt lgkmcnt(0)")
    def mprep():
        sk = g.newlab("noprep2")
        g.e("s_cmp_eq_u32 s54, 0"); g.e(f"s_cbranch_scc1 {sk}")
        check(g, list(range(A, A+8)), ml, A+10, "mp", False)
        g.e(f"v_mov_b32 v{A+10}, s57"); g.e(f"v_sub_f32 v{A+10}, 1.0, v{A+10}")
        g.e(f"v_lshlrev_b32 v{RAW}, 16, v{A+8}"); g.e(f"v_and_b32 v{RAW+1}, 0xffff0000, v{A+8}"); g.e(f"v_lshlrev_b32 v{RAW+2}, 16, v{A+9}"); g.e(f"v_and_b32 v{RAW+3}, 0xffff0000, v{A+9}")
        for i in range(4): g.e(f"v_add_f32 v{A+i}, v{A+i}, v{A+4+i}")
        for i in range(4): rows_red(g, "v_add_f32", A+i, A+11)
        for i in range(4): g.e(f"v_add_f32 v{RAW+i}, v{RAW+i}, v{A+i}"); g.e(f"v_mul_f32 v{RAW+i}, v{RAW+i}, v{A+10}")
        g.e("s_mul_i32 s46, s55, 1152"); g.e("s_add_u32 s53, s53, s46")
        g.lab(sk)
    npre = len([l for l in loads if l.tag[0] == "V"])
    lastpaced = 32 - D
    for t in range(32):
        if t == cfg["CLF"]: C.append(Chunk("lfac", lfac, cost=350))
        if t == 16: C.append(Chunk("fold", fold, cost=150))
        if t == cfg["CSN"]: C.append(Chunk("send", lambda: (only(g, WS_, send), g.stamp(6)), cost=300))
        if t == cfg["CMP"]: C.append(Chunk("mprep", mprep, needs=("ML",), cost=200))
        if t == cfg["CPK"]: C.append(Chunk("recv", lambda: only(g, WR, recv), needs=("PKL",), cost=300))
        C.append(Chunk(f"pv{t}", (lambda t=t: pv(t)), needs=((f"V{t}",) if t < lastpaced else (f"V{min(t,31)}!",)), cost=70))
    class FlushOnly(str): pass
    def sched():
        done_tags = list(issued0)
        for c in C:
            c.needs = tuple(n for n in c.needs)
        pre = [c for c in C]
        idx = next(i for i, c in enumerate(pre) if any(n.endswith("!") for n in c.needs))
        schedule(g, loads, pre[:idx], D, cfg["BUD"], flush=True, issued0=issued0)
        for c in pre[idx:]:
            for n in c.needs:
                if not n.endswith("!"): g.wait(n)
            c.emit()
    sched()
    g.stamp(7); g.tstamp(0)
    g.e("v_lshrrev_b32 v6, 3, v1"); g.e("v_lshlrev_b32 v6, 3, v6"); g.e("s_lshl_b32 s46, s44, 6"); g.e("v_add_u32 v6, s46, v6")
    g.e("s_and_b32 s46, s44, 4"); g.e("v_mov_b32 v3, s46")
    g.nop(2)
    for i in range(4): g.e(f"v_add_f32_dpp v{40+i}, v{44+i}, v{40+i} row_ror:8 row_mask:0xf bank_mask:0xf")
    for i in range(4): g.e(f"v_mul_f32 v{40+i}, v{40+i}, v2")
    g.e("s_mov_b32 exec_lo, 0x00ff00ff"); g.e("s_mov_b32 exec_hi, 0x00ff00ff")
    g.e(f"ds_write_b128 v5, v[40:43] offset:{L_O}")
    g.e("s_mov_b64 exec, -1")
    g.e("v_lshrrev_b32 v5, 5, v1"); g.e("s_lshl_b32 s46, s44, 1"); g.e("v_add_u32 v5, s46, v5"); g.e("v_mul_u32_u24 v5, 2304, v5")
    g.e("v_and_b32 v2, 7, v1"); g.e("v_lshl_add_u32 v5, v2, 4, v5"); g.e("v_and_b32 v2, 16, v1"); g.e("v_lshl_add_u32 v5, v2, 3, v5")
    g.e("s_mov_b32 s48, 0x00ff00ff"); g.e("s_mov_b32 s49, 0xff00ff00")
    g.e("s_waitcnt lgkmcnt(0)"); g.e("s_barrier")
    g.stamp(8); g.tstamp(1)
    R = 12
    for j in range(9): g.e(f"ds_read_b64 v[{R+2*j}:{R+2*j+1}], v6 offset:{L_O+512*j}")
    g.e(f"ds_read_b32 v30, v3 offset:{L_A}")
    g.e("s_waitcnt lgkmcnt(2)")
    for st in (4, 2, 1):
        for j in range(st):
            for k in (0, 1): g.e(f"v_add_f32 v{R+2*j+k}, v{R+2*j+k}, v{R+2*(st+j)+k}")
    g.e("s_waitcnt lgkmcnt(0)")
    g.tstamp(2)
    for t in range(2): g.e(f"v_fma_f32 v{R+t}, v{R+t}, v30, v{R+16+t}")
    for t in range(2):
        g.e(f"v_cvt_pk_bf16_f32 v{R+t}, v{R+t}, v{R+t}")
        for i in range(4): g.e(f"v_and_b32 v{32+4*t+i}, v{R+t}, v{8+i}")
    g.e("s_waitcnt vmcnt(0)"); g.vm = []
    g.nop(1)
    g.tstamp(3)
    AC = 48
    def pw(cb):
        g.e("s_mov_b64 exec, s[48:49]")
        g.e(f"ds_write_b128 v5, {q(AC+4*cb)} offset:{L_P + cb*256}")
        g.e("s_mov_b64 exec, -1")
    for cb in range(9):
        for t in range(2):
            g.e(f"v_mfma_f32_16x16x32_bf16 {q(AC+4*cb)}, {q(32+4*t)}, {q(wreg(cb*2+t))}, {'0' if t==0 else q(AC+4*cb)}")
        if cb == 2: g.nop(4)
        if cb >= 2: pw(cb-2)
    g.nop(1)
    pw(7)
    g.nop(1)
    pw(8)
    g.tstamp(4)
    g.e("v_and_b32 v6, 31, v1"); g.e("s_lshl_b32 s46, s44, 5"); g.e("v_add_u32 v6, s46, v6")
    g.e("v_lshrrev_b32 v2, 5, v1"); g.e(f"v_mul_u32_u24 v2, {8*2304}, v2"); g.e("v_lshl_add_u32 v2, v6, 4, v2")
    g.e("v_and_b32 v3, 7, v6"); g.e("v_lshlrev_b32 v3, 5, v3"); g.e("v_and_b32 v4, 8, v6"); g.e("v_lshl_add_u32 v3, v4, 1, v3")
    g.e("v_lshrrev_b32 v4, 4, v6"); g.e("v_lshl_add_u32 v3, v4, 8, v3")
    g.e("s_cmp_ge_u32 s44, 5"); g.e("s_cbranch_scc1 L_cons")
    g.e("s_cmp_eq_u32 s44, 4"); g.e("s_cselect_b32 s46, 0xffff, -1"); g.e("s_mov_b32 s47, 0")
    g.e("s_waitcnt lgkmcnt(0)"); g.tstamp(5); g.e("s_barrier"); g.tstamp(6)
    for j in range(8): g.e(f"ds_read_b128 {q(48+4*j)}, v2 offset:{L_P+2304*j}")
    for st, w in ((4, 0), (2, None), (1, None)):
        if w is not None: g.e("s_waitcnt lgkmcnt(0)")
        for j in range(st):
            for i in range(4): g.e(f"v_add_f32 v{48+4*j+i}, v{48+4*j+i}, v{48+4*(st+j)+i}")
    for i in range(4): g.e(f"v_mov_b32 v{52+i}, v{48+i}")
    g.nop(1)
    for i in range(4): g.e(f"v_permlane32_swap_b32 v{52+i}, v{48+i}")
    g.nop(1)
    for i in range(4): g.e(f"v_add_f32 v{48+i}, v{48+i}, v{52+i}")
    for i in range(4): g.e(f"v_bfi_b32 v{48+i}, v7, s{TB+i}, v{48+i}")
    g.e("s_mov_b64 exec, s[46:47]")
    g.tstamp(7)
    g.e("buffer_store_dwordx4 v[48:51], v3, s[12:15], s74 offen sc1")
    g.tstamp(8)
    g.e("s_mov_b64 exec, -1")
    g.e("s_branch L_fin")
    g.lab("L_cons")
    g.e("v_lshrrev_b32 v5, 4, v1"); g.e("v_and_b32 v6, 15, v1")
    g.e(f"v_mul_u32_u24 v2, {SLOT}, v5"); g.e("v_lshl_add_u32 v2, v6, 4, v2"); g.e("v_lshlrev_b32 v3, 3, v6")
    g.e(f"s_mul_i32 s64, s55, {32*SLOT}"); g.e("s_lshl_b32 s46, s56, 8"); g.e("s_add_u32 s64, s64, s46"); g.e(f"s_add_u32 s64, s64, {PA_OFF}")
    for j in range(1, 8): g.e(f"s_add_u32 s{64+j}, s{63+j}, {4*SLOT}")
    g.e("s_waitcnt lgkmcnt(0)"); g.e("s_barrier")
    g.e("s_cmp_eq_u32 s54, 0"); g.e("s_cbranch_scc1 L_keeper")
    fl = [f"buffer_load_dwordx4 {q(48+4*j)}, v2, s[12:15], s{64+j} offen sc1" for j in range(8)]
    for x in fl: g.e(x)
    g.e("s_waitcnt vmcnt(0)")
    st_ = cfg.get("stamps"); cfg["stamps"] = 0
    check(g, list(range(48, 80)), fl, 5, "fp", False)
    cfg["stamps"] = st_
    for st in (4, 2, 1):
        for j in range(st):
            for i in range(4): g.e(f"v_add_f32 v{48+4*j+i}, v{48+4*j+i}, v{48+4*(st+j)+i}")
    for sw in ("v_permlane16_swap_b32", "v_permlane32_swap_b32"):
        for i in range(4): g.e(f"v_mov_b32 v{52+i}, v{48+i}")
        g.nop(1)
        for i in range(4): g.e(f"{sw} v{52+i}, v{48+i}")
        g.nop(1)
        for i in range(4): g.e(f"v_add_f32 v{48+i}, v{48+i}, v{52+i}")
    for i in range(4): g.e(f"v_fma_f32 v{48+i}, v{48+i}, s57, v{RAW+i}")
    g.e("v_cvt_pk_bf16_f32 v48, v48, v49"); g.e("v_cvt_pk_bf16_f32 v49, v50, v51")
    g.e("s_mov_b64 exec, 0xffff")
    g.e("buffer_store_dwordx2 v[48:49], v3, s[32:35], s53 offen")
    g.e("s_mov_b64 exec, -1")
    g.e("s_branch L_fin")
    g.lab("L_keeper")
    g.e("s_cmp_lg_u32 s2, 255"); g.e("s_cbranch_scc1 L_fin")
    g.e("s_cmp_lg_u32 s44, 5"); g.e("s_cbranch_scc1 L_fin")
    g.e(f"v_mul_u32_u24 v2, {SLOT}, v1")
    g.e(f"s_mov_b32 s64, {PA_OFF}")
    for j in range(1, 4): g.e(f"s_add_u32 s{64+j}, s{63+j}, {64*SLOT}")
    kl_ = [f"buffer_load_dwordx4 {q(48+4*j)}, v2, s[12:15], s{64+j} offen offset:{PK+512} sc1" for j in range(4)]
    for x in kl_: g.e(x)
    g.e("s_waitcnt vmcnt(0)")
    check(g, list(range(48, 64)), kl_, 5, "kp", False)
    g.e(f"v_mov_b32 v5, s{NT}"); g.e("v_mov_b32 v6, 0")
    g.e("s_mov_b64 exec, 1")
    g.e(f"buffer_store_dword v5, v6, s[12:15], 0 offen offset:{E_OFF} sc1")
    g.e("s_mov_b64 exec, -1")
    g.lab("L_fin")
    if cfg.get("stamps"):
        g.e("s_waitcnt vmcnt(0)")
        g.stamp(9); g.tstamp(9)
        g.e("s_load_dwordx2 s[46:47], s[0:1], 104")
        g.e("s_load_dwordx2 s[50:51], s[0:1], 96")
        g.e("s_waitcnt lgkmcnt(0)")
        g.e("s_add_u32 s46, s46, 0x20000000"); g.e("s_addc_u32 s47, s47, 0")
        g.e("s_lshl_b32 s48, s2, 3"); g.e("s_add_u32 s48, s48, s44"); g.e("s_mul_i32 s48, s48, 80"); g.e("v_mov_b32 v1, s48")
        for j in range(20): g.e(f"v_mov_b32 v{8+j}, s{80+j}")
        g.e("v_mov_b32 v2, 0"); g.e("v_mov_b32 v3, s100")
        g.e("s_mov_b64 exec, 1")
        for j in range(5): g.e(f"global_store_dwordx4 v1, v[{8+4*j}:{11+4*j}], s[46:47] offset:{16*j}")
        if cfg.get("DBGT"):
            for j in range(10):
                g.e(f"global_atomic_umax v2, v{8+2*j}, s[50:51] offset:{4+4*j}")
            for k, j in enumerate((0, 2, 3, 7)):
                g.e(f"v_not_b32 v4, v{8+2*j}"); g.e(f"global_atomic_umax v2, v4, s[50:51] offset:{44+4*k}"); g.e("s_nop 2")
        g.e("s_cmp_eq_u32 s100, 0"); g.e("s_cbranch_scc1 L_end")
        g.e("global_atomic_add v2, v3, s[50:51]")
    g.lab("L_end")
    g.e("s_endpgm")
    L.append('.section .rodata,"a"'); L.append(".p2align 6"); L.append(f".amdhsa_kernel {NAME}")
    L.append("  .amdhsa_next_free_vgpr 256"); L.append("  .amdhsa_next_free_sgpr 102"); L.append("  .amdhsa_accum_offset 256")
    L.append("  .amdhsa_group_segment_fixed_size 0"); L.append("  .amdhsa_kernarg_size 112"); L.append("  .amdhsa_user_sgpr_count 2")
    L.append("  .amdhsa_user_sgpr_kernarg_segment_ptr 1"); L.append("  .amdhsa_system_sgpr_workgroup_id_x 1"); L.append(".end_amdhsa_kernel")
    return "\n".join(L) + "\n"

class Cfg(dict):
    def __getitem__(s, k):
        if k == "WPOS":
            w0, w1, wb = dict.__getitem__(s, "W0"), dict.__getitem__(s, "W1"), dict.__getitem__(s, "WB")
            if wb: return lambda i: w0 + (i // wb) * (w1 - w0) // max(1, (17 // wb))
            return lambda i: w0 + i * (w1 - w0) // 17
        return dict.__getitem__(s, k)
DEF = dict(DBGT=0, PT=0, FL=1, AT=0, TS=0, DG=0, D=5, BUD=400, GAP=2, KH=22, KQ=24, M=36, W0=8, W1=30, WB=0, CLF=11, CSN=18, TML=20, CMP=22, TPL=26, CPK=28, stamps=0, verbose=0)
_gen = gen
def gen(cfg): return _gen(Cfg(cfg))
if __name__ == "__main__":
    import build
    out = sys.argv[1]
    cfg = dict(DEF)
    for a in sys.argv[2:]:
        k, v = a.split("="); cfg[k] = int(v)
    open(out, "w").write(gen(cfg))
    build.build(out)
    print("lds", LDS_BYTES)
```

```python
import sys
NAME = "gated_mix__sliding_block_cached__mixer_channel_mlp__decode_kernel"

E_OFF = 0x0
Q_OFF = 0x01000
QROW = 4096*4 + 256
H_OFF = 0x30000
HROW = 4608*4 + 256
Y_OFF = 0x60000
PA_OFF = 0x90000
PK = 2304
SLOT = 2304 + 768 + 256
WS_BYTES = PA_OFF + 256 * SLOT
L_P = 0
L_U = 0
L_LN = 16 * 2304
L_O = L_LN + 512
L_Y = L_O + 4608
L_Q = L_Y + 4096
L_ST = L_Q + 512
L_A = L_ST + 128
L_SY = L_A + 64
LDS_BYTES = L_SY + 64
WQ, WS_, WR = 1, 2, 3
SPIN_MAX = 100000
NT = 40
TB = 28

class G:
    def __init__(s, cfg):
        s.L = []; s.vm = []; s.cfg = cfg; s.nlab = 0
    def e(s, t): s.L.append("    " + t)
    def lab(s, t): s.L.append(t + ":")
    def newlab(s, p): s.nlab += 1; return f"L_{p}_{s.nlab}"
    def nop(s, n): s.e(f"s_nop {n-1}")
    def issue(s, tag, txt, weight=1):
        dg = s.cfg.get("DG", 0)
        if (dg & 1 and tag in ("UST", "STS", "PKS")) or (dg & 2 and tag in ("Q", "STL", "PKL", "HL", "ML")) or (dg & 4 and tag in ("X", "X9", "B1", "G")) or (dg & 16 and tag[0] == "W") or (dg & 64 and tag == "UST") or (dg & 128 and tag == "STS") or (dg & 256 and tag == "PKS"):
            s.vm.append((tag, 0)); return
        if tag in ("UST", "STS", "PKS"):
            if dg & 512: txt = txt.replace(" sc1", "")
            if dg & 1024: txt = txt.replace(" sc1", " sc1 nt")
            if dg & 2048: txt = txt.replace(" sc1", " sc0 sc1")
        s.e(txt); s.vm.append((tag, weight))
    def pending(s, tag): return any(t == tag for t, _ in s.vm)
    def wait(s, tag):
        idx = [i for i, (t, _) in enumerate(s.vm) if t == tag]
        if not idx: return False
        i = idx[-1]
        n = sum(w for _, w in s.vm[i+1:])
        s.e(f"s_waitcnt vmcnt({min(n,63)})")
        s.vm = s.vm[i+1:]
        return True
    def pace(s, d):
        tot = sum(w for _, w in s.vm)
        if d and tot >= d:
            s.e(f"s_waitcnt vmcnt({d-1})")
            while sum(w for _, w in s.vm) > d - 1: s.vm.pop(0)
    def stamp(s, k):
        if s.cfg.get("stamps") and not s.cfg.get("TS"): s.e(f"s_memrealtime s[{80+2*k}:{81+2*k}]")
    def tstamp(s, k):
        if s.cfg.get("stamps") and s.cfg.get("TS"): s.e(f"s_memtime s[{80+2*k}:{81+2*k}]")

class Load:
    def __init__(s, tag, emit, after=(), paced=True): s.tag, s.emit, s.after, s.paced = tag, emit, after, paced
class Chunk:
    def __init__(s, name, emit, needs=(), cost=100, gap=None): s.name, s.emit, s.needs, s.cost, s.gap = name, emit, needs, cost, gap

def schedule(g, loads, chunks, D, budget, flush=True, issued0=()):
    done = {}; issued = set(issued0); ci = 0
    def force():
        nonlocal ci
        c = chunks[ci]
        for t in c.needs:
            assert t in issued, (c.name, t)
            g.wait(t)
        if not (g.cfg.get("DG", 0) & 8 and c.name not in ("init", "addr", "setup", "sm3")): c.emit()
        done[c.name] = slot; ci += 1
    slot = 0
    for ld in loads:
        for a in ld.after:
            while a not in done: force()
        if ld.paced: g.pace(D)
        ld.emit(); issued.add(ld.tag)
        left = budget
        while ci < len(chunks) and left > 0:
            c = chunks[ci]
            if any(t not in issued or g.pending(t) for t in c.needs): break
            if c.gap and slot < done[c.gap[0]] + c.gap[1]: break
            force(); left -= c.cost
        slot += 1
    if flush:
        while ci < len(chunks): force()
    else:
        assert ci == len(chunks), ("chunks left at merge", [c.name for c in chunks[ci:]])
    if g.cfg.get("verbose"): print({k: v for k, v in done.items()}, "slots", slot)

def q(r): return f"v[{r}:{r+3}]"
KB = 48
SP = 176
US = SP; UW = 212; UT = 232; RAW = 248; DB = 232
WIN = {4: 0, 0: 2, 6: 4, 2: 6, 5: 8, 1: 10, 7: 12, 3: 14}
def vreg(t): return SP + 4*t if t < 14 else KB + 4*(t-14)
def wreg(i): return KB + 4*(18+i) if i < 14 else SP + 4*(i-14)

def rows_red(g, op, r, t):
    for sw in ("v_permlane16_swap_b32", "v_permlane32_swap_b32"):
        g.e(f"v_mov_b32 v{t}, v{r}"); g.nop(2); g.e(f"{sw} v{t}, v{r}"); g.nop(1); g.e(f"{op} v{r}, v{r}, v{t}")
def dpp_red(g, op, r, ctrl):
    g.nop(2); g.e(f"{op}_dpp v{r}, v{r}, v{r} {ctrl} row_mask:0xf bank_mask:0xf")
def check(g, regs, reloads, tmp, name, wide, extra=()):
    top = g.newlab(name + "_top"); ok = g.newlab(name + "_ok")
    g.e(f"s_mov_b32 s47, {0 if g.cfg.get('DG') else SPIN_MAX}")
    g.lab(top)
    if wide:
        for i, r in enumerate(regs):
            if i == 0: g.e(f"v_xor_b32 v{tmp}, s{NT}, v{r}")
            else: g.e(f"v_bitop3_b32 v{tmp}, v{r}, s{NT+(i&3)}, v{tmp} bitop3:0xbe")
        for r, tv in extra: g.e(f"v_bitop3_b32 v{tmp}, v{r}, v{tv}, v{tmp} bitop3:0xbe")
    else:
        for i, r in enumerate(regs): g.e(f"v_xor_b32 v{r}, s{TB+(i&3)}, v{r}")
        rs = list(regs)
        g.e(f"v_or_b32 v{tmp}, v{rs[0]}, v{rs[1]}"); rs = rs[2:]
        while rs: g.e(f"v_or3_b32 v{tmp}, v{tmp}, v{rs[0]}, v{rs[1]}"); rs = rs[2:]
    g.e(f"v_and_b32 v{tmp}, {0xffff if wide else 0xff:#x}, v{tmp}")
    g.e(f"v_cmp_ne_u32 vcc, 0, v{tmp}")
    g.e("s_sub_u32 s47, s47, 1"); g.e(f"s_cbranch_scc1 {ok}")
    g.nop(3)
    g.e(f"s_cbranch_vccz {ok}")
    if g.cfg.get("stamps"): g.e("s_add_u32 s100, s100, 1")
    for t in reloads: g.e(t)
    g.e("s_waitcnt vmcnt(0)")
    g.e(f"s_branch {top}")
    g.lab(ok)
def lds_wait(g, off, target, tmp, zero, name):
    top = g.newlab(name + "_top"); ok = g.newlab(name + "_ok")
    g.e(f"s_mov_b32 s47, {SPIN_MAX*16}")
    g.e(f"v_mov_b32 v{zero}, 0")
    g.lab(top)
    g.e(f"ds_read_b32 v{tmp}, v{zero} offset:{L_SY+off}")
    g.e("s_waitcnt lgkmcnt(0)")
    g.e(f"v_readfirstlane_b32 s46, v{tmp}")
    g.e("s_sub_u32 s47, s47, 1"); g.e(f"s_cbranch_scc1 {ok}")
    g.e(f"s_cmp_lt_u32 s46, {target}"); g.e(f"s_cbranch_scc1 {top}")
    g.lab(ok)
def lds_signal(g, off, t0, t1):
    g.e("s_mov_b64 exec, 1")
    g.e(f"v_mov_b32 v{t0}, 0"); g.e(f"v_mov_b32 v{t1}, 1")
    g.e(f"ds_add_u32 v{t0}, v{t1} offset:{L_SY+off}")
    g.e("s_mov_b64 exec, -1")
def srd(g, base, nrec):
    g.e(f"s_mov_b32 s{base+2}, {nrec:#x}"); g.e(f"s_mov_b32 s{base+3}, 0x20000")
def ktxt(t): return f"buffer_load_dwordx4 {q(KB+4*t)}, v2, s[4:7], s{64+(t>>2)} offen offset:{(t&3)*1024} nt"

def common_addr(g):
    g.e("v_bfe_u32 v3, v1, 3, 1"); g.e("v_lshlrev_b32 v3, 10, v3"); g.e("v_lshrrev_b32 v5, 4, v1"); g.e("v_lshl_add_u32 v3, v5, 8, v3")
    g.e("v_and_b32 v5, 7, v1"); g.e("v_lshl_add_u32 v3, v5, 4, v3"); g.e("s_xor_b32 s46, s62, 1"); g.e("s_lshl_b32 s46, s46, 7"); g.e("v_add_u32 v3, s46, v3")
QR = 44
QL = [f"buffer_load_dwordx4 {q(QR)}, v0, s[12:15], s75 offen sc1"]
def only(g, w, body):
    sk = g.newlab("only")
    g.e(f"s_cmp_lg_u32 s44, {w}"); g.e(f"s_cbranch_scc1 {sk}")
    body()
    g.lab(sk)

def shared_stream(g):
    cfg = g.cfg
    S = []
    for t in range(32):
        S.append(Load(f"K{t}", (lambda t=t: g.issue(f"K{t}", ktxt(t)))))
    def vl(t):
        pr = t & 15
        if t == 16: g.e("v_xor_b32 v3, 0x80, v3")
        g.issue(f"V{t}", f"buffer_load_dwordx4 {q(vreg(t))}, v3, s[8:11], s{64+(pr>>1)} offen offset:{(pr&1)*2048} nt")
    V = []
    for t in range(32):
        after = ("addr", "mm3") if t < 14 else (f"qk{(t-14)>>1}",)
        V.append(Load(f"V{t}", (lambda t=t: vl(t)), after=after))
    return S, V

def role_part(g, role):
    cfg = g.cfg; D = cfg["D"]
    g.lab(f"L_role_{role}")
    g.vm = []
    if role == "Q":
        stride = 8192
        g.e("s_load_dwordx2 s[20:21], s[0:1], 24"); srd(g, 20, 576*4096*2)
        g.e("s_lshl_b32 s52, s48, 3"); g.e("s_add_u32 s52, s52, s49"); g.e("s_lshl_b32 s45, s52, 8"); g.e("s_lshl_b32 s52, s52, 7"); g.e(f"s_add_u32 s45, s45, {Q_OFF}")
    if role == "H":
        stride = 9216
        g.e("s_load_dwordx2 s[20:21], s[0:1], 48"); srd(g, 20, 576*4608*2)
        g.e("s_load_dwordx2 s[36:37], s[0:1], 56"); srd(g, 36, 4608*2)
        g.e("s_mul_i32 s52, s48, 9"); g.e("s_add_u32 s52, s52, s49"); g.e("s_sub_u32 s52, s52, 8"); g.e("s_lshl_b32 s45, s52, 8"); g.e("s_lshl_b32 s52, s52, 7"); g.e(f"s_add_u32 s45, s45, {H_OFF}")
    if role == "Y":
        stride = 1152
        g.e("s_load_dwordx2 s[20:21], s[0:1], 64"); srd(g, 20, 4608*576*2)
        g.e("s_sub_u32 s49, s49, 17")
        g.e(f"s_mul_i32 s52, s48, {576*1152}"); g.e("s_lshl_b32 s45, s49, 7"); g.e("s_add_u32 s52, s52, s45")
        g.e("s_mul_i32 s51, s48, 2304"); g.e("s_lshl_b32 s49, s49, 8"); g.e("s_add_u32 s45, s51, s49"); g.e(f"s_add_u32 s45, s45, {Y_OFF}")
        g.e("s_mul_i32 s46, s44, 288"); g.e("s_add_u32 s51, s51, s46"); g.e(f"s_add_u32 s51, s51, {H_OFF}")
    if role == "C":
        g.e("s_load_dwordx2 s[36:37], s[0:1], 80"); srd(g, 36, 576*2)
        g.e("s_load_dwordx2 s[20:21], s[0:1], 72"); srd(g, 20, 576*2)
        g.e("s_load_dwordx2 s[32:33], s[0:1], 88"); srd(g, 32, 4608*2)
        g.e("s_sub_u32 s49, s49, 26"); g.e("s_lshl_b32 s52, s49, 3"); g.e("s_add_u32 s52, s52, s44"); g.e("s_mul_i32 s52, s52, 12288")
        g.e(f"s_mul_i32 s46, s48, {512*1152}"); g.e("s_add_u32 s52, s52, s46")
        g.e("s_lshl_b32 s56, s49, 1"); g.e("s_add_u32 s56, s56, s44"); g.e("s_sub_u32 s56, s56, 6"); g.e("s_mov_b32 s55, s48")
        g.e("s_cmp_lt_u32 s56, 9"); g.e("s_cselect_b32 s54, 1, 0"); g.e("s_cmp_ge_u32 s44, 6"); g.e("s_cselect_b32 s54, s54, 0")
    else:
        g.e("v_lshrrev_b32 v6, 3, v1"); g.e("v_and_b32 v7, 7, v1")
        g.e(f"v_mul_u32_u24 v14, {stride}, v6"); g.e("v_lshlrev_b32 v3, 3, v14"); g.e("v_lshl_add_u32 v3, v7, 4, v3"); g.e("v_lshl_add_u32 v14, v7, 4, v14")
        g.e(f"s_mul_i32 s53, s44, {72*stride}"); g.e("s_add_u32 s53, s53, s52")
        rowb = HROW if role == "Y" else 1152
        sh = 2 if role == "Y" else 1
        g.e(f"v_mul_u32_u24 v15, {rowb}, v7"); g.e(f"v_lshl_add_u32 v4, v6, {sh+3}, v15"); g.e(f"v_lshl_add_u32 v15, v6, {sh}, v15")
        g.e("s_mul_i32 s50, s44, 144")
        if role == "H": g.e("v_lshlrev_b32 v16, 1, v1")
    g.e("s_waitcnt lgkmcnt(0)")
    g.e(f"s_load_dword s{NT}, s[12:13], {E_OFF}")
    S, V = shared_stream(g)
    shared = (S + V)[:cfg["M"]]
    loads = []; chunks = []
    def qload():
        g.e(f"s_mul_i32 s75, s61, {QROW}"); g.e("s_lshl_b32 s46, s60, 10"); g.e("s_add_u32 s75, s75, s46"); g.e(f"s_add_u32 s75, s75, {Q_OFF}")
        g.issue("Q", QL[0], 0)
    def qchk():
        check(g, list(range(QR, QR+4)), QL, 43, "qp", True)
        g.e("s_mov_b32 s46, 0x07060302")
        g.e(f"v_perm_b32 v{QR}, v{QR+1}, v{QR}, s46"); g.e(f"v_perm_b32 v{QR+1}, v{QR+3}, v{QR+2}, s46")
        g.e("v_lshlrev_b32 v43, 3, v1")
        g.e(f"ds_write_b64 v43, v[{QR}:{QR+1}] offset:{L_Q}")
        lds_signal(g, 8, QR+2, QR+3)
    kq = cfg["KH"] if role == "Y" else cfg["KQ"]
    shared = shared[:kq] + [Load("Q", lambda: only(g, WQ, qload), after=(() if role in "YC" else ("urd",)), paced=False)] + shared[kq:]
    QC = Chunk("qchk", lambda: only(g, WQ, qchk), needs=("Q",), cost=100)
    def uload(i):
        g.issue(f"U{i}", f"buffer_load_dwordx4 {q(US+4*i)}, {'v3' if i < 8 else 'v14'}, s[20:23], s53 offen nt")
        if i < 8: g.e(f"s_add_u32 s53, s53, {stride if i < 7 else 57*stride}")
    U = [Load(f"U{i}", (lambda i=i: uload(i))) for i in range(9)]
    def c_init():
        g.e("s_waitcnt lgkmcnt(0)"); g.e("s_barrier")
        g.e(f"s_add_u32 s{NT}, s{NT}, 0x01010101")
        for i in (1, 2, 3):
            g.e(f"s_lshr_b32 s{NT+i}, s{NT}, {8*i}"); g.e(f"s_lshl_b32 s46, s{NT}, {32-8*i}"); g.e(f"s_or_b32 s{NT+i}, s{NT+i}, s46")
        for i in range(4): g.e(f"s_and_b32 s{TB+i}, s{NT+i}, 0xff")
    def touch():
        fl = " sc1" if cfg["PT"] & 4 else ""
        if role != "C" and cfg["PT"] & 1:
            rb = {"Q": QROW, "H": HROW, "Y": 8*2304}[role]
            g.e(f"s_mul_i32 s46, s44, {rb}"); g.e("s_add_u32 s46, s46, s45"); g.e("v_lshlrev_b32 v230, 2, v1")
            g.issue("T", f"buffer_load_dword v231, v230, s[12:15], s46 offen{fl}", 0)
        if cfg["PT"] & 2:
            def b():
                g.e("s_add_u32 s46, s63, s62"); g.e(f"s_mul_i32 s46, s46, {SLOT}"); g.e(f"s_add_u32 s46, s46, {PA_OFF}"); g.e("v_lshlrev_b32 v230, 6, v1")
                g.e("s_mov_b32 exec_hi, 0xffff")
                g.issue("T", f"buffer_load_dword v231, v230, s[12:15], s46 offen{fl}", 0)
                g.e("s_mov_b64 exec, -1")
            only(g, 4, b)
    if cfg["PT"]: loads.append(Load("T", touch, paced=False))
    chunks.append(Chunk("zero", lambda: None, cost=0))
    chunks.append(Chunk("init", c_init, cost=1000, gap=("zero", D-1)))
    if role in "QH":
        loads.append(Load("X", lambda: g.issue("X", "buffer_load_dwordx4 v[8:11], v4, s[24:27], s50 offen")))
        loads.append(Load("X9", lambda: g.issue("X9", "buffer_load_ushort v12, v15, s[24:27], s50 offen offset:128")))
        if role == "H": loads.append(Load("B1", lambda: g.issue("B1", "buffer_load_ushort v13, v16, s[36:39], s52 offen nt"), paced=False))
        loads += U + shared
    if role == "Y":
        hl = [f"buffer_load_dwordx4 {q(RAW)}, v4, s[12:15], s51 offen sc1", f"buffer_load_dwordx4 {q(RAW+4)}, v4, s[12:15], s51 offen offset:16 sc1",
              "buffer_load_dword v12, v15, s[12:15], s51 offen offset:256 sc1"]
        H = [Load("HL", (lambda t=t: g.issue("HL", t))) for t in hl]
        loads += U + shared[:cfg["KH"]+1] + H + shared[cfg["KH"]+1:]
    if role == "C":
        def gl():
            sk = g.newlab("gate")
            g.e("s_cmp_eq_u32 s54, 0"); g.e(f"s_cbranch_scc1 {sk}")
            for i in range(8): g.e(f"v_mov_b32 v{24+i}, 0")
            g.e("s_mul_i32 s46, s55, 1152")
            g.issue("G", "buffer_load_dwordx4 v[16:19], v0, s[24:27], s46 offen", 0)
            g.issue("G", "buffer_load_dwordx4 v[20:23], v0, s[36:39], 0 offen", 0)
            g.e("s_mov_b64 exec, 0xff")
            g.issue("G", "buffer_load_dwordx4 v[24:27], v0, s[24:27], s46 offen offset:1024", 0)
            g.issue("G", "buffer_load_dwordx4 v[28:31], v0, s[36:39], 0 offen offset:1024", 0)
            g.e("s_mov_b64 exec, -1")
            g.lab(sk)
        def pl(i):
            g.issue(f"P{i}", f"buffer_load_dwordx4 {q(US+4*i)}, v0, s[16:19], s52 offen offset:{(i&3)*1024}")
            if i & 3 == 3: g.e("s_add_u32 s52, s52, 4096")
        P = [Load(f"P{i}", (lambda i=i: pl(i))) for i in range(12)]
        loads += P[:D] + [Load("G", gl, paced=False)] + P[D:] + shared
        def gc():
            sk = g.newlab("gatec")
            g.e("s_cmp_eq_u32 s54, 0"); g.e(f"s_cbranch_scc1 {sk}")
            g.e("v_mov_b32 v32, 0")
            for i in (16, 17, 18, 19, 24, 25, 26, 27):
                g.e(f"v_lshlrev_b32 v33, 16, v{i}"); g.e(f"v_lshlrev_b32 v34, 16, v{i+4}"); g.e("v_fmac_f32 v32, v33, v34")
                g.e(f"v_and_b32 v33, 0xffff0000, v{i}"); g.e(f"v_and_b32 v34, 0xffff0000, v{i+4}"); g.e("v_fmac_f32 v32, v33, v34")
            for r in (8, 4, 2, 1): dpp_red(g, "v_add_f32", 32, f"row_ror:{r}")
            rows_red(g, "v_add_f32", 32, 33)
            g.e("v_mul_f32 v32, 0xbfb8aa3b, v32"); g.e("v_exp_f32 v32, v32"); g.nop(1); g.e("v_add_f32 v32, 1.0, v32"); g.e("v_rcp_f32 v32, v32"); g.nop(1)
            g.e("v_readfirstlane_b32 s57, v32")
            g.lab(sk)
            g.stamp(1); g.stamp(2)
        chunks.append(Chunk("gate", gc, needs=("G",), cost=400))
        chunks.append(Chunk("mm3", lambda: None, needs=("P11",), cost=0))
        chunks.append(Chunk("addr", lambda: common_addr(g), cost=80))
    if role == "H":
        def ln1():
            for i in range(4):
                g.e(f"v_lshlrev_b32 v{16+2*i}, 16, v{8+i}"); g.e(f"v_and_b32 v{17+2*i}, 0xffff0000, v{8+i}")
            g.e("v_lshlrev_b32 v24, 16, v12")
            g.e("v_add_f32 v40, v16, v17"); g.e("v_mul_f32 v41, v16, v16"); g.e("v_fmac_f32 v41, v17, v17")
            for i in range(2, 9):
                g.e(f"v_add_f32 v40, v40, v{16+i}"); g.e(f"v_fmac_f32 v41, v{16+i}, v{16+i}")
            for r in (40, 41):
                dpp_red(g, "v_add_f32", r, "row_ror:8"); rows_red(g, "v_add_f32", r, 42)
            g.e("v_lshlrev_b32 v42, 3, v7"); g.e("s_lshl_b32 s46, s44, 6"); g.e("v_add_u32 v43, s46, v42")
            g.e("s_mov_b64 exec, 0xff"); g.e(f"ds_write_b64 v43, v[40:41] offset:{L_LN}")
            lds_signal(g, 0, 44, 45)
        def ln2():
            lds_wait(g, 0, 8, 44, 45, "ln")
            for i in range(8): g.e(f"ds_read_b64 v[{UT+2*i}:{UT+2*i+1}], v42 offset:{L_LN+64*i}")
            g.e("s_waitcnt lgkmcnt(0)")
            for st in (4, 2, 1):
                for i in range(st):
                    for k in (0, 1): g.e(f"v_add_f32 v{UT+2*i+k}, v{UT+2*i+k}, v{UT+2*(st+i)+k}")
            g.e(f"v_mul_f32 v40, 0x3ae38e39, v{UT}"); g.e(f"v_mul_f32 v41, 0x3ae38e39, v{UT+1}")
            g.e("v_fma_f32 v41, -v40, v40, v41"); g.e("v_max_f32 v41, 0, v41"); g.e("v_add_f32 v41, 0x3727c5ac, v41"); g.e("v_rsq_f32 v41, v41")
            for i in range(9): g.e(f"v_sub_f32 v{16+i}, v{16+i}, v40")
            for i in range(9): g.e(f"v_mul_f32 v{16+i}, v{16+i}, v41")
            for i in range(4): g.e(f"v_cvt_pk_bf16_f32 v{8+i}, v{16+2*i}, v{17+2*i}")
            g.e("v_cvt_pk_bf16_f32 v12, v24, 0")
        chunks.append(Chunk("ln1", ln1, needs=("X9",), cost=300))
        chunks.append(Chunk("ln2", ln2, cost=400, gap=("ln1", cfg["GAP"])))
    if role == "Y":
        def hchk():
            g.stamp(1)
            g.e("v_and_b32 v13, 3, v6"); g.e("v_lshlrev_b32 v13, 3, v13"); g.e(f"v_mov_b32 v16, s{NT}"); g.e("v_alignbit_b32 v13, v16, v16, v13")
            check(g, list(range(RAW, RAW+8)), hl, 16, "hp", True, extra=[(12, 13)])
            g.e("s_mov_b32 s49, 0x07060302")
            for i in range(4): g.e(f"v_perm_b32 v{8+i}, v{RAW+1+2*i}, v{RAW+2*i}, s49")
            g.e("v_lshrrev_b32 v12, 16, v12")
        chunks.append(QC)
        chunks.append(Chunk("hchk", hchk, needs=("HL",), cost=120))
        chunks.append(Chunk("addr", lambda: common_addr(g), cost=80))
    if role != "C":
        def win():
            g.e("s_mov_b32 s48, 0x05040100"); g.e("s_mov_b32 s49, 0x07060302")
            for i in range(18):
                if i in (2, 7): g.e(f"v_mov_b32 v{UW+i}, v12")
                elif i in (10, 15): g.e(f"v_lshlrev_b32 v{UW+i}, 16, v12")
                else: g.e(f"v_mov_b32 v{UW+i}, 0")
        chunks.append(Chunk("win", win, needs=(("X9",) if role != "Y" else ()), cost=80))
        def mm(k):
            if k == 0 and role != "Y": g.stamp(1)
            for c in (2*k, 2*k+1):
                qd, e_ = c >> 1, c & 1
                tb = UT + 4*(c & 3)
                for j in range(4): g.e(f"v_perm_b32 v{tb+j}, v{US+4*(2*j+1)+qd}, v{US+4*(2*j)+qd}, s{48+e_}")
                acc = 16 + 4*c
                g.e(f"v_mfma_f32_16x16x32_bf16 {q(acc)}, {q(US+32)}, {q(UW+WIN[c])}, 0")
                g.nop(1)
                g.e(f"v_mfma_f32_16x16x32_bf16 {q(acc)}, {q(tb)}, v[8:11], {q(acc)}")
        for k in range(4): chunks.append(Chunk(f"mm{k}", (lambda k=k: mm(k)), needs=("U8",), cost=110))
        def uwr():
            g.e("v_lshrrev_b32 v5, 5, v1"); g.e("v_mul_u32_u24 v5, 2176, v5")
            g.e("v_mul_u32_u24 v8, 272, v7"); g.e("v_add_u32 v5, v5, v8")
            g.e("v_and_b32 v8, 16, v1"); g.e("v_add_u32 v5, v5, v8")
            g.e("s_mul_i32 s46, s44, 4352"); g.e("v_add_u32 v5, s46, v5")
            g.e("s_mov_b32 exec_lo, 0x00ff00ff"); g.e("s_mov_b32 exec_hi, 0xff00ff00")
            for c in range(8): g.e(f"ds_write_b128 v5, {q(16+4*c)} offset:{L_U + c*32}")
            lds_signal(g, 4, 8, 9)
        def urd():
            g.e("v_lshlrev_b32 v5, 5, v7"); g.e("v_lshl_add_u32 v5, v6, 2, v5")
            g.e("s_mul_i32 s46, s44, 272"); g.e("v_add_u32 v5, s46, v5")
            rb = {"Q": QROW, "H": HROW, "Y": 8*2304}[role]
            g.e(f"s_mul_i32 s50, s44, {rb}"); g.e("s_add_u32 s50, s50, s45")
            g.e("v_and_b32 v11, 3, v1"); g.e("v_lshlrev_b32 v11, 3, v11"); g.e(f"v_mov_b32 v12, s{NT}"); g.e("v_alignbit_b32 v11, v12, v12, v11")
            g.e(f"s_mov_b32 s49, {0xff if role=='Y' else 0xffff:#x}")
            lds_wait(g, 4, 8, 8, 9, "uc")
            for k in range(16): g.e(f"ds_read_b32 v{16+k}, v5 offset:{L_U + k*2176}")
            g.e("v_lshlrev_b32 v9, 2, v1")
            g.e("s_waitcnt lgkmcnt(0)")
            for st in (8, 4, 2, 1):
                for i in range(st): g.e(f"v_add_f32 v{16+i}, v{16+i}, v{16+st+i}")
            if role == "H":
                g.e("v_lshlrev_b32 v13, 16, v13")
                g.e("v_add_f32 v16, v16, v13")
                g.e("v_mul_f32 v17, v16, v16"); g.e("v_mov_b32 v18, 0x3d372713"); g.e("v_fma_f32 v17, v17, v18, 1.0")
                g.e("v_mul_f32 v17, v17, v16"); g.e("v_mul_f32 v17, 0xc0135761, v17")
                g.e("v_exp_f32 v17, v17"); g.nop(1); g.e("v_add_f32 v17, 1.0, v17"); g.e("v_rcp_f32 v17, v17"); g.nop(1)
                g.e("v_mul_f32 v16, v16, v17")
            if role != "Y": g.e("v_cvt_pk_bf16_f32 v16, v16, v16")
            g.e("v_bfi_b32 v14, s49, v11, v16")
            at = cfg["AT"]
            if at == 0: g.issue("UST", "buffer_store_dword v14, v9, s[12:15], s50 offen sc1", 0)
            if at == 1: g.issue("UST", "buffer_atomic_swap v14, v9, s[12:15], s50 offen", 0)
            if at == 2: g.issue("UST", "buffer_atomic_swap v14, v9, s[12:15], s50 offen sc1", 0)
            if at == 3:
                g.issue("UST", "buffer_store_dword v14, v9, s[12:15], s50 offen", 0)
                g.issue("UST", "buffer_wbl2 sc1", 0)
            g.stamp(2)
        chunks.append(Chunk("uwr", uwr, cost=200))
        chunks.append(Chunk("urd", urd, cost=500, gap=("uwr", cfg["GAP"])))
        if role != "Y": chunks.append(Chunk("addr", lambda: common_addr(g), cost=80))
    if role != "Y": chunks.append(QC)
    schedule(g, loads, chunks, D, cfg["BUD"], flush=False)
    g.e("s_branch L_common")
    return g.vm

def gen(cfg):
    g = G(cfg); L = g.L; D = cfg["D"]
    L.append(f"; @launch grid=(256,1,1) block=(512,1,1) lds={LDS_BYTES}")
    L.append('.amdgcn_target "amdgcn-amd-amdhsa--gfx950"')
    L.append(".text"); L.append(f".globl {NAME}"); L.append(".p2align 8"); L.append(f".type {NAME},@function"); g.lab(NAME)
    g.stamp(0)
    if cfg.get("HOLD"): g.e("s_memrealtime s[98:99]")
    if cfg.get("stamps"): g.e("s_mov_b32 s100, 0")
    g.e("s_cmp_ge_u32 s2, 256"); g.e("s_cbranch_scc1 L_end")
    g.e("s_load_dwordx2 s[12:13], s[0:1], 104")
    g.e("s_load_dwordx2 s[4:5], s[0:1], 8")
    g.e("s_load_dwordx2 s[8:9], s[0:1], 16")
    g.e("s_load_dwordx2 s[16:17], s[0:1], 32")
    g.e("s_load_dwordx2 s[24:25], s[0:1], 0")
    g.e("v_lshrrev_b32 v5, 6, v0"); g.e("v_and_b32 v1, 63, v0"); g.e("v_mov_b32 v8, 0"); g.e("v_mov_b32 v9, 0"); g.e("v_mov_b32 v10, 0"); g.e("v_mov_b32 v11, 0"); g.e("v_lshlrev_b32 v0, 4, v1")
    srd(g, 4, 0x10000000); srd(g, 8, 0x10000000); srd(g, 12, WS_BYTES); srd(g, 16, 4096*576*2); srd(g, 24, 8*576*2)
    g.e("v_readfirstlane_b32 s44, v5")
    g.e(f"ds_write_b128 v8, v[8:11] offset:{L_SY}"); g.e(f"ds_write_b32 v8, v8 offset:{L_SY+16}")
    g.e("s_and_b32 s48, s2, 7"); g.e("s_lshr_b32 s49, s2, 3")
    g.e("s_lshl_b32 s60, s48, 1"); g.e("s_bfe_u32 s61, s2, 0x10004"); g.e("s_add_u32 s60, s60, s61")
    g.e("s_lshr_b32 s61, s2, 5")
    g.e("s_bfe_u32 s62, s2, 0x10003")
    g.e("s_lshl_b32 s64, s61, 4"); g.e("s_add_u32 s64, s64, s60"); g.e("s_lshl_b32 s63, s64, 1"); g.e("s_lshl_b32 s64, s64, 21")
    g.e("s_lshl_b32 s65, s62, 18"); g.e("s_add_u32 s64, s64, s65"); g.e("s_add_u32 s64, s64, 0x180000")
    g.e("s_lshl_b32 s65, s44, 12"); g.e("s_add_u32 s64, s64, s65")
    for j in range(1, 8): g.e(f"s_add_u32 s{64+j}, s{63+j}, 0x8000")
    g.e("v_bfe_u32 v2, v1, 2, 2"); g.e("v_lshlrev_b32 v2, 8, v2"); g.e("v_lshrrev_b32 v5, 4, v1"); g.e("v_lshl_add_u32 v2, v5, 6, v2")
    g.e("v_and_b32 v5, 3, v1"); g.e("v_lshl_add_u32 v2, v5, 4, v2")
    g.e("s_mov_b32 s54, 0")
    g.e("s_cmp_lt_u32 s2, 64"); g.e("s_cbranch_scc1 L_role_Q")
    g.e("s_cmp_lt_u32 s2, 136"); g.e("s_cbranch_scc1 L_role_H")
    g.e("s_cmp_lt_u32 s2, 208"); g.e("s_cbranch_scc1 L_role_Y")
    states = [[x for x in role_part(g, r) if x[1]] for r in "CQHY"]
    g.vm = max(states, key=len)
    for st in states: assert st == g.vm[len(g.vm)-len(st):], (st, g.vm)
    g.lab("L_common")
    g.stamp(3)
    S, V = shared_stream(g)
    allS = S + V
    issued0 = [l.tag for l in allS[:cfg["M"]]]
    rest = allS[cfg["M"]:]
    def wl(i): g.issue(f"W{i}", f"buffer_load_dwordx4 {q(wreg(i))}, v4, s[16:19], s72 offen offset:{(i&1)*1152+(i>>1)*128}")
    W = [Load(f"W{i}", (lambda i=i: wl(i)), after=((f"qk{(18+i)>>1}",) if i < 14 else (f"pv{i-14}",)), paced=not cfg["WB"]) for i in range(18)]
    pkl = f"buffer_load_dwordx4 v[12:15], v6, s[12:15], s77 offen offset:{PK} sc1"
    A = DB
    ml = [f"buffer_load_dwordx4 {q(A+4*j)}, v{A+12}, s[12:15], s{50+j} offen sc1" for j in range(2)]
    def mload():
        sk = g.newlab("noprep")
        g.e("s_cmp_eq_u32 s54, 0"); g.e(f"s_cbranch_scc1 {sk}")
        g.e(f"v_lshrrev_b32 v{A+12}, 4, v1"); g.e(f"v_and_b32 v{A+13}, 15, v1")
        g.e(f"v_mul_u32_u24 v{A+12}, 2304, v{A+12}"); g.e(f"v_lshl_add_u32 v{A+12}, v{A+13}, 4, v{A+12}"); g.e(f"v_lshlrev_b32 v{A+13}, 3, v{A+13}")
        g.e("s_lshl_b32 s46, s56, 8")
        g.e(f"s_mul_i32 s50, s55, {8*2304}"); g.e("s_add_u32 s50, s50, s46"); g.e(f"s_add_u32 s50, s50, {Y_OFF}"); g.e(f"s_add_u32 s51, s50, {4*2304}")
        g.e("s_lshl_b32 s53, s56, 7")
        g.issue("ML", f"buffer_load_dwordx2 v[{A+8}:{A+9}], v{A+13}, s[20:23], s53 offen", 0)
        for x in ml: g.issue("ML", x, 0)
        g.lab(sk)
    extra = {}
    wpos = cfg["WPOS"]
    for i in range(18): extra.setdefault(wpos(i), []).append(W[i])
    extra.setdefault(cfg["TML"], []).append(Load("ML", mload, after=("sm0",), paced=False))
    def pload():
        g.e("v_min_u32 v6, 512, v0".replace("512", "0x200"))
        g.issue("PKL", pkl, 0)
    extra.setdefault(cfg["TPL"], []).append(Load("PKL", lambda: only(g, WR, pload), after=("fold",), paced=False))
    loads = []
    for l in rest:
        loads.append(l)
        if l.tag[0] == "V": loads += extra.pop(int(l.tag[1:]), [])
    assert not extra, extra
    C = []
    C.append(Chunk("addr", lambda: None, cost=0)); C.append(Chunk("mm3", lambda: None, cost=0))
    def setup():
        g.e(f"s_mul_i32 s76, s63, {SLOT}"); g.e(f"s_add_u32 s76, s76, {PA_OFF}")
        g.e(f"s_mul_i32 s74, s62, {SLOT}"); g.e(f"s_sub_u32 s77, {SLOT}, s74"); g.e("s_add_u32 s74, s74, s76"); g.e("s_add_u32 s77, s77, s76")
        g.e("v_lshrrev_b32 v5, 3, v1"); g.e("v_mul_u32_u24 v4, 2304, v5"); g.e("v_and_b32 v5, 7, v1"); g.e("v_lshl_add_u32 v4, v5, 4, v4")
        g.e("s_lshl_b32 s72, s60, 1"); g.e("s_lshr_b32 s46, s44, 2"); g.e("s_add_u32 s72, s72, s46"); g.e("s_lshl_b32 s72, s72, 1"); g.e("s_add_u32 s72, s72, s62")
        g.e("s_lshl_b32 s72, s72, 2"); g.e("s_and_b32 s46, s44, 3"); g.e("s_add_u32 s72, s72, s46"); g.e(f"s_mul_i32 s72, s72, {16*1152}")
        g.e("v_and_b32 v5, 1, v1"); g.e("v_lshlrev_b32 v5, 4, v5"); g.e("v_mov_b32 v6, 0xffff"); g.e("v_lshlrev_b32 v5, v5, v6")
        g.e("v_bfe_u32 v6, v1, 1, 2")
        for i in range(4):
            g.e(f"v_cmp_eq_u32 vcc, {i}, v6"); g.nop(2); g.e(f"v_cndmask_b32 v{8+i}, 0, v5, vcc")
        g.e("v_bfe_i32 v42, v1, 2, 1"); g.e("v_mov_b32 v7, 0xff")
    C.append(Chunk("setup", setup, cost=150))
    def qrd():
        g.e("v_bfe_u32 v43, v1, 3, 1"); g.e("v_lshlrev_b32 v43, 8, v43"); g.e("v_lshrrev_b32 v5, 4, v1"); g.e("v_lshl_add_u32 v43, v5, 6, v43")
        g.e("v_and_b32 v5, 3, v1"); g.e("v_lshl_add_u32 v43, v5, 4, v43")
        lds_wait(g, 8, 1, 40, 41, "qc")
        g.e(f"ds_read_b128 v[44:47], v43 offset:{L_Q}")
        g.e("s_waitcnt lgkmcnt(0)")
        for i in range(4):
            g.e(f"v_bfi_b32 v{32+i}, v42, 0, v{44+i}"); g.e(f"v_and_b32 v{36+i}, v42, v{44+i}")
        g.nop(2)
        g.stamp(4)
    C.append(Chunk("qrd", qrd, cost=250))
    def dsum(pr):
        d = DB + 4*(pr & 3)
        g.e(f"v_mov_b32_dpp v{16+pr}, v{d} quad_perm:[0,0,0,0] row_mask:0xf bank_mask:0xf")
        for c in (1, 2, 3):
            g.e(f"v_add_f32_dpp v{16+pr}, v{d+c}, v{16+pr} quad_perm:[{c},{c},{c},{c}] row_mask:0xf bank_mask:0xf")
    def qk(pr):
        d = DB + 4*(pr & 3)
        g.e(f"v_mfma_f32_16x16x32_bf16 {q(d)}, {q(KB+8*pr)}, v[32:35], 0")
        g.e(f"v_mfma_f32_16x16x32_bf16 {q(d)}, {q(KB+8*pr+4)}, v[36:39], {q(d)}")
        if pr >= 2: dsum(pr-2)
        else: g.nop(4)
    for pr in range(16): C.append(Chunk(f"qk{pr}", (lambda pr=pr: qk(pr)), needs=(f"K{2*pr+1}",), cost=60))
    def sm0():
        g.nop(4); dsum(14); g.nop(2); dsum(15)
        g.e("v_max3_f32 v44, v16, v17, v18")
        for i in range(19, 31, 2): g.e(f"v_max3_f32 v44, v44, v{i}, v{i+1}")
        g.e("v_max_f32 v44, v44, v31")
        dpp_red(g, "v_max_f32", 44, "row_half_mirror"); rows_red(g, "v_max_f32", 44, 41)
        g.e("s_mov_b32 s46, 0x3e0293ee")
        g.e("v_mul_f32 v44, s46, v44")
    def sm1():
        g.e("s_mov_b32 s46, 0x3e0293ee")
        for i in range(16): g.e(f"v_fma_f32 v{16+i}, v{16+i}, s46, -v44")
        for i in range(16): g.e(f"v_exp_f32 v{16+i}, v{16+i}")
    def sm2():
        g.e("v_add_f32 v45, v16, v17")
        for i in range(2, 16): g.e(f"v_add_f32 v45, v45, v{16+i}")
        for i in range(16): g.e(f"v_cvt_pk_bf16_f32 v{16+i}, v{16+i}, v{16+i}")
        dpp_red(g, "v_add_f32", 45, "row_half_mirror"); rows_red(g, "v_add_f32", 45, 41)
    def sm3():
        g.e("v_readlane_b32 s58, v44, 0"); g.e("v_readlane_b32 s59, v44, 8")
        g.e("s_lshl_b32 s46, s44, 4"); g.e("v_add_u32 v5, s46, v1")
        g.e("s_mov_b64 exec, 0x101")
        g.e(f"ds_write_b64 v5, v[44:45] offset:{L_ST}")
        lds_signal(g, 12, 12, 13)
        g.e("v_lshrrev_b32 v5, 5, v1"); g.e("v_lshlrev_b32 v5, 8, v5"); g.e("v_and_b32 v6, 7, v1"); g.e("v_lshl_add_u32 v5, v6, 5, v5")
        g.e("v_and_b32 v6, 16, v1"); g.e("v_add_u32 v5, v5, v6"); g.e("s_lshl_b32 s46, s44, 9"); g.e("v_add_u32 v5, s46, v5")
        g.e("s_waitcnt lgkmcnt(0)")
        g.stamp(5)
    for n, f, c in (("sm0", sm0, 200), ("sm1", sm1, 200), ("sm2", sm2, 220), ("sm3", sm3, 90)): C.append(Chunk(n, f, cost=c))
    def pv(t):
        pr = t & 15
        for par in range(2):
            a = 32 + 4*par
            for i in range(4):
                own = (i < 2) == (par == 0)
                if own: g.e(f"v_and_b32 v{a+i}, v{16+pr}, v{8+i}")
                else: g.e(f"v_and_b32_dpp v{a+i}, v{16+pr}, v{8+i} row_half_mirror row_mask:0xf bank_mask:0xf")
        if not g.wait(f"V{t}"): g.nop(1)
        for par in range(2):
            acc = 40 + 4*par
            g.e(f"v_mfma_f32_16x16x32_bf16 {q(acc)}, {q(32+4*par)}, {q(vreg(t))}, {'0' if pr==0 else q(acc)}")
    def lfac():
        R = RAW + 4
        g.e(f"v_and_b32 v6, 7, v1"); g.e("v_lshlrev_b32 v6, 4, v6"); g.e(f"v_lshrrev_b32 v{R}, 5, v1"); g.e(f"v_lshl_add_u32 v6, v{R}, 3, v6")
        lds_wait(g, 12, 8, R, R+1, "sc")
        g.e(f"ds_read_b64 v[{R}:{R+1}], v6 offset:{L_ST}")
        g.e("s_waitcnt lgkmcnt(0)")
        g.e(f"v_mov_b32 v{R+2}, v{R}")
        red8 = ("row_half_mirror", "quad_perm:[1,0,3,2]", "quad_perm:[2,3,0,1]")
        for c in red8: dpp_red(g, "v_max_f32", R+2, c)
        g.e(f"v_and_b32 v{R+2}, 0xffffff00, v{R+2}")
        g.e(f"v_sub_f32 v{R}, v{R}, v{R+2}"); g.e(f"v_exp_f32 v{R}, v{R}"); g.nop(1); g.e(f"v_mul_f32 v{R+1}, v{R+1}, v{R}")
        for c in red8: dpp_red(g, "v_add_f32", R+1, c)
        g.e(f"v_and_b32 v{R+1}, 0xffffff00, v{R+1}")
        g.e("v_cmp_gt_u32 vcc, 32, v1")
        g.e(f"v_mov_b32 v{R}, s58"); g.e(f"v_mov_b32 v{R+3}, s59"); g.e(f"v_cndmask_b32 v{R}, v{R+3}, v{R}, vcc")
        g.e(f"v_sub_f32 v{R}, v{R}, v{R+2}"); g.e(f"v_exp_f32 v2, v{R}")
        g.e(f"v_readlane_b32 s58, v{R+2}, 0"); g.e(f"v_readlane_b32 s59, v{R+1}, 0"); g.e(f"v_readlane_b32 s78, v{R+2}, 32"); g.e(f"v_readlane_b32 s79, v{R+1}, 32")
    def fold():
        g.nop(8)
        for i in range(4): g.e(f"v_add_f32_dpp v{12+i}, v{44+i}, v{40+i} row_ror:8 row_mask:0xf bank_mask:0xf")
        for i in range(4): g.e(f"v_mul_f32 v{12+i}, v{12+i}, v2")
        g.e("s_mov_b32 exec_lo, 0x00ff00ff"); g.e("s_mov_b32 exec_hi, 0x00ff00ff")
        g.e(f"ds_write_b128 v5, v[12:15] offset:{L_Y}")
        lds_signal(g, 16, RAW+4, RAW+5)
        g.e("s_waitcnt lgkmcnt(0)")
    def send():
        g.e("v_and_b32 v6, 31, v1"); g.e("v_lshlrev_b32 v6, 4, v6"); g.e(f"v_lshrrev_b32 v12, 5, v1"); g.e("v_lshl_add_u32 v6, v12, 11, v6")
        lds_wait(g, 16, 8, 12, 13, "yc")
        for j in range(4): g.e(f"ds_read_b128 {q(A+4*j)}, v6 offset:{L_Y+512*j}")
        g.e("s_waitcnt lgkmcnt(0)")
        for i in range(4):
            g.e(f"v_add_f32 v{A+i}, v{A+i}, v{A+4+i}"); g.e(f"v_add_f32 v{A+8+i}, v{A+8+i}, v{A+12+i}"); g.e(f"v_add_f32 v{A+i}, v{A+i}, v{A+8+i}")
        for i in range(4): g.e(f"v_mov_b32 v{A+4+i}, v{A+i}")
        g.nop(1)
        for i in range(4): g.e(f"v_permlane32_swap_b32 v{A+4+i}, v{A+i}")
        g.nop(1)
        for i in range(4): g.e(f"v_add_f32 v{12+i}, v{A+i}, v{A+4+i}")
        for i, r in enumerate((58, 59, 78, 79)): g.e(f"v_writelane_b32 v{12+i}, s{r}, 32")
        for i in range(4): g.e(f"v_bfi_b32 v{12+i}, v7, s{TB+i}, v{12+i}")
        g.e(f"s_mov_b32 exec_hi, {0xff if cfg['FL'] else 1:#x}")
        g.issue("PKS", f"buffer_store_dwordx4 v[12:15], v0, s[12:15], s74 offen offset:{PK} sc1", 0)
        g.e("s_mov_b64 exec, -1")
    def recv():
        check(g, [12, 13, 14, 15], [pkl], A, "pk", False)
        for i in range(4): g.e(f"v_readlane_b32 s{48+i}, v{12+i}, 32")
        g.e("v_cmp_gt_u32 vcc, 16, v1")
        for k, (r0, r1) in enumerate(((58, 78), (59, 79), (48, 50), (49, 51))):
            g.e(f"v_mov_b32 v{A+4+k}, s{r0}"); g.e(f"v_mov_b32 v{A}, s{r1}"); g.e(f"v_cndmask_b32 v{A+4+k}, v{A}, v{A+4+k}, vcc")
        g.e(f"v_max_f32 v{A}, v{A+4}, v{A+6}")
        g.e(f"v_sub_f32 v{A+4}, v{A+4}, v{A}"); g.e(f"v_sub_f32 v{A+6}, v{A+6}, v{A}"); g.e(f"v_exp_f32 v{A+4}, v{A+4}"); g.e(f"v_exp_f32 v{A+6}, v{A+6}"); g.nop(1)
        g.e(f"v_mul_f32 v{A+5}, v{A+5}, v{A+4}"); g.e(f"v_fmac_f32 v{A+5}, v{A+7}, v{A+6}"); g.e(f"v_rcp_f32 v{A+5}, v{A+5}"); g.nop(1)
        g.e(f"v_mul_f32 v{A+4}, v{A+4}, v{A+5}"); g.e(f"v_mul_f32 v{A+6}, v{A+6}, v{A+5}")
        for i in range(4): g.e(f"v_mul_f32 v{12+i}, v{12+i}, v{A+6}")
        g.e(f"v_lshrrev_b32 v{A}, 2, v1")
        g.e("s_mov_b32 exec_hi, 0")
        g.e(f"ds_write_b128 v0, v[12:15] offset:{L_O+4096}")
        g.e("s_mov_b32 exec_lo, 0x00010001")
        g.e(f"ds_write_b32 v{A}, v{A+4} offset:{L_A}")
        g.e("s_mov_b64 exec, -1")
        g.e("s_waitcnt lgkmcnt(0)")
    def mprep():
        sk = g.newlab("noprep2")
        g.e("s_cmp_eq_u32 s54, 0"); g.e(f"s_cbranch_scc1 {sk}")
        check(g, list(range(A, A+8)), ml, A+10, "mp", False)
        g.e(f"v_mov_b32 v{A+10}, s57"); g.e(f"v_sub_f32 v{A+10}, 1.0, v{A+10}")
        g.e(f"v_lshlrev_b32 v{RAW}, 16, v{A+8}"); g.e(f"v_and_b32 v{RAW+1}, 0xffff0000, v{A+8}"); g.e(f"v_lshlrev_b32 v{RAW+2}, 16, v{A+9}"); g.e(f"v_and_b32 v{RAW+3}, 0xffff0000, v{A+9}")
        for i in range(4): g.e(f"v_add_f32 v{A+i}, v{A+i}, v{A+4+i}")
        for i in range(4): rows_red(g, "v_add_f32", A+i, A+11)
        for i in range(4): g.e(f"v_add_f32 v{RAW+i}, v{RAW+i}, v{A+i}"); g.e(f"v_mul_f32 v{RAW+i}, v{RAW+i}, v{A+10}")
        g.e("s_mul_i32 s46, s55, 1152"); g.e("s_add_u32 s53, s53, s46")
        g.lab(sk)
    npre = len([l for l in loads if l.tag[0] == "V"])
    lastpaced = 32 - D
    for t in range(32):
        if t == cfg["CLF"]: C.append(Chunk("lfac", lfac, cost=350))
        if t == 16: C.append(Chunk("fold", fold, cost=150))
        if t == cfg["CSN"]: C.append(Chunk("send", lambda: (only(g, WS_, send), g.stamp(6)), cost=300))
        if t == cfg["CMP"]: C.append(Chunk("mprep", mprep, needs=("ML",), cost=200))
        if t == cfg["CPK"]: C.append(Chunk("recv", lambda: only(g, WR, recv), needs=("PKL",), cost=300))
        C.append(Chunk(f"pv{t}", (lambda t=t: pv(t)), needs=((f"V{t}",) if t < lastpaced else (f"V{min(t,31)}!",)), cost=70))
    class FlushOnly(str): pass
    def sched():
        done_tags = list(issued0)
        for c in C:
            c.needs = tuple(n for n in c.needs)
        pre = [c for c in C]
        idx = next(i for i, c in enumerate(pre) if any(n.endswith("!") for n in c.needs))
        schedule(g, loads, pre[:idx], D, cfg["BUD"], flush=True, issued0=issued0)
        for c in pre[idx:]:
            for n in c.needs:
                if not n.endswith("!"): g.wait(n)
            c.emit()
    sched()
    g.stamp(7); g.tstamp(0)
    g.e("v_lshrrev_b32 v6, 3, v1"); g.e("v_lshlrev_b32 v6, 3, v6"); g.e("s_lshl_b32 s46, s44, 6"); g.e("v_add_u32 v6, s46, v6")
    g.e("s_and_b32 s46, s44, 4"); g.e("v_mov_b32 v3, s46")
    g.nop(2)
    for i in range(4): g.e(f"v_add_f32_dpp v{40+i}, v{44+i}, v{40+i} row_ror:8 row_mask:0xf bank_mask:0xf")
    for i in range(4): g.e(f"v_mul_f32 v{40+i}, v{40+i}, v2")
    g.e("s_mov_b32 exec_lo, 0x00ff00ff"); g.e("s_mov_b32 exec_hi, 0x00ff00ff")
    g.e(f"ds_write_b128 v5, v[40:43] offset:{L_O}")
    g.e("s_mov_b64 exec, -1")
    g.e("v_lshrrev_b32 v5, 5, v1"); g.e("s_lshl_b32 s46, s44, 1"); g.e("v_add_u32 v5, s46, v5"); g.e("v_mul_u32_u24 v5, 2304, v5")
    g.e("v_and_b32 v2, 7, v1"); g.e("v_lshl_add_u32 v5, v2, 4, v5"); g.e("v_and_b32 v2, 16, v1"); g.e("v_lshl_add_u32 v5, v2, 3, v5")
    g.e("s_mov_b32 s48, 0x00ff00ff"); g.e("s_mov_b32 s49, 0xff00ff00")
    g.e("s_waitcnt lgkmcnt(0)"); g.e("s_barrier")
    g.stamp(8); g.tstamp(1)
    R = 12
    for j in range(9): g.e(f"ds_read_b64 v[{R+2*j}:{R+2*j+1}], v6 offset:{L_O+512*j}")
    g.e(f"ds_read_b32 v30, v3 offset:{L_A}")
    g.e("s_waitcnt lgkmcnt(2)")
    for st in (4, 2, 1):
        for j in range(st):
            for k in (0, 1): g.e(f"v_add_f32 v{R+2*j+k}, v{R+2*j+k}, v{R+2*(st+j)+k}")
    g.e("s_waitcnt lgkmcnt(0)")
    g.tstamp(2)
    for t in range(2): g.e(f"v_fma_f32 v{R+t}, v{R+t}, v30, v{R+16+t}")
    for t in range(2):
        g.e(f"v_cvt_pk_bf16_f32 v{R+t}, v{R+t}, v{R+t}")
        for i in range(4): g.e(f"v_and_b32 v{32+4*t+i}, v{R+t}, v{8+i}")
    g.e("s_waitcnt vmcnt(0)"); g.vm = []
    g.nop(1)
    g.tstamp(3)
    AC = 48
    def pw(cb):
        g.e("s_mov_b64 exec, s[48:49]")
        g.e(f"ds_write_b128 v5, {q(AC+4*cb)} offset:{L_P + cb*256}")
        g.e("s_mov_b64 exec, -1")
    for cb in range(9):
        for t in range(2):
            g.e(f"v_mfma_f32_16x16x32_bf16 {q(AC+4*cb)}, {q(32+4*t)}, {q(wreg(cb*2+t))}, {'0' if t==0 else q(AC+4*cb)}")
        if cb == 2: g.nop(4)
        if cb >= 2: pw(cb-2)
    g.nop(1)
    pw(7)
    g.nop(1)
    pw(8)
    g.tstamp(4)
    g.e("v_and_b32 v6, 31, v1"); g.e("s_lshl_b32 s46, s44, 5"); g.e("v_add_u32 v6, s46, v6")
    g.e("v_lshrrev_b32 v2, 5, v1"); g.e(f"v_mul_u32_u24 v2, {8*2304}, v2"); g.e("v_lshl_add_u32 v2, v6, 4, v2")
    g.e("v_and_b32 v3, 7, v6"); g.e("v_lshlrev_b32 v3, 5, v3"); g.e("v_and_b32 v4, 8, v6"); g.e("v_lshl_add_u32 v3, v4, 1, v3")
    g.e("v_lshrrev_b32 v4, 4, v6"); g.e("v_lshl_add_u32 v3, v4, 8, v3")
    g.e("s_cmp_ge_u32 s44, 5"); g.e("s_cbranch_scc1 L_cons")
    g.e("s_cmp_eq_u32 s44, 4"); g.e("s_cselect_b32 s46, 0xffff, -1"); g.e("s_mov_b32 s47, 0")
    g.e("s_waitcnt lgkmcnt(0)"); g.tstamp(5); g.e("s_barrier"); g.tstamp(6)
    for j in range(8): g.e(f"ds_read_b128 {q(48+4*j)}, v2 offset:{L_P+2304*j}")
    for st, w in ((4, 0), (2, None), (1, None)):
        if w is not None: g.e("s_waitcnt lgkmcnt(0)")
        for j in range(st):
            for i in range(4): g.e(f"v_add_f32 v{48+4*j+i}, v{48+4*j+i}, v{48+4*(st+j)+i}")
    for i in range(4): g.e(f"v_mov_b32 v{52+i}, v{48+i}")
    g.nop(1)
    for i in range(4): g.e(f"v_permlane32_swap_b32 v{52+i}, v{48+i}")
    g.nop(1)
    for i in range(4): g.e(f"v_add_f32 v{48+i}, v{48+i}, v{52+i}")
    for i in range(4): g.e(f"v_bfi_b32 v{48+i}, v7, s{TB+i}, v{48+i}")
    g.e("s_mov_b64 exec, s[46:47]")
    g.tstamp(7)
    g.e("buffer_store_dwordx4 v[48:51], v3, s[12:15], s74 offen sc1")
    g.tstamp(8)
    g.e("s_mov_b64 exec, -1")
    g.e("s_branch L_fin")
    g.lab("L_cons")
    g.e("v_lshrrev_b32 v5, 4, v1"); g.e("v_and_b32 v6, 15, v1")
    g.e(f"v_mul_u32_u24 v2, {SLOT}, v5"); g.e("v_lshl_add_u32 v2, v6, 4, v2"); g.e("v_lshlrev_b32 v3, 3, v6")
    g.e(f"s_mul_i32 s64, s55, {32*SLOT}"); g.e("s_lshl_b32 s46, s56, 8"); g.e("s_add_u32 s64, s64, s46"); g.e(f"s_add_u32 s64, s64, {PA_OFF}")
    for j in range(1, 8): g.e(f"s_add_u32 s{64+j}, s{63+j}, {4*SLOT}")
    g.e("s_waitcnt lgkmcnt(0)"); g.e("s_barrier")
    g.e("s_cmp_eq_u32 s54, 0"); g.e("s_cbranch_scc1 L_keeper")
    fl = [f"buffer_load_dwordx4 {q(48+4*j)}, v2, s[12:15], s{64+j} offen sc1" for j in range(8)]
    for x in fl: g.e(x)
    g.e("s_waitcnt vmcnt(0)")
    st_ = cfg.get("stamps"); cfg["stamps"] = 0
    check(g, list(range(48, 80)), fl, 5, "fp", False)
    cfg["stamps"] = st_
    for st in (4, 2, 1):
        for j in range(st):
            for i in range(4): g.e(f"v_add_f32 v{48+4*j+i}, v{48+4*j+i}, v{48+4*(st+j)+i}")
    for sw in ("v_permlane16_swap_b32", "v_permlane32_swap_b32"):
        for i in range(4): g.e(f"v_mov_b32 v{52+i}, v{48+i}")
        g.nop(1)
        for i in range(4): g.e(f"{sw} v{52+i}, v{48+i}")
        g.nop(1)
        for i in range(4): g.e(f"v_add_f32 v{48+i}, v{48+i}, v{52+i}")
    for i in range(4): g.e(f"v_fma_f32 v{48+i}, v{48+i}, s57, v{RAW+i}")
    g.e("v_cvt_pk_bf16_f32 v48, v48, v49"); g.e("v_cvt_pk_bf16_f32 v49, v50, v51")
    g.e("s_mov_b64 exec, 0xffff")
    g.e("buffer_store_dwordx2 v[48:49], v3, s[32:35], s53 offen")
    g.e("s_mov_b64 exec, -1")
    g.e("s_branch L_fin")
    g.lab("L_keeper")
    g.e("s_cmp_lg_u32 s2, 255"); g.e("s_cbranch_scc1 L_fin")
    g.e("s_cmp_lg_u32 s44, 5"); g.e("s_cbranch_scc1 L_fin")
    g.e(f"v_mul_u32_u24 v2, {SLOT}, v1")
    g.e(f"s_mov_b32 s64, {PA_OFF}")
    for j in range(1, 4): g.e(f"s_add_u32 s{64+j}, s{63+j}, {64*SLOT}")
    kl_ = [f"buffer_load_dwordx4 {q(48+4*j)}, v2, s[12:15], s{64+j} offen offset:{PK+512} sc1" for j in range(4)]
    for x in kl_: g.e(x)
    g.e("s_waitcnt vmcnt(0)")
    check(g, list(range(48, 64)), kl_, 5, "kp", False)
    g.e(f"v_mov_b32 v5, s{NT}"); g.e("v_mov_b32 v6, 0")
    g.e("s_mov_b64 exec, 1")
    g.e(f"buffer_store_dword v5, v6, s[12:15], 0 offen offset:{E_OFF} sc1")
    g.e("s_mov_b64 exec, -1")
    g.lab("L_fin")
    if cfg.get("HOLD"):
        g.e("s_cmp_lg_u32 s2, 0"); g.e("s_cbranch_scc1 L_end"); g.e("s_cmp_lg_u32 s44, 0"); g.e("s_cbranch_scc1 L_end")
        g.lab("L_hold")
        g.e("s_memrealtime s[96:97]"); g.e("s_waitcnt lgkmcnt(0)"); g.e("s_sub_u32 s96, s96, s98"); g.e(f"s_cmp_lt_u32 s96, {cfg['HOLD']}"); g.e("s_cbranch_scc1 L_hold")
    if cfg.get("stamps"):
        g.e("s_waitcnt vmcnt(0)")
        g.stamp(9); g.tstamp(9)
        g.e("s_load_dwordx2 s[46:47], s[0:1], 104")
        g.e("s_load_dwordx2 s[50:51], s[0:1], 96")
        g.e("s_waitcnt lgkmcnt(0)")
        g.e("s_add_u32 s46, s46, 0x20000000"); g.e("s_addc_u32 s47, s47, 0")
        g.e("s_lshl_b32 s48, s2, 3"); g.e("s_add_u32 s48, s48, s44"); g.e("s_mul_i32 s48, s48, 80"); g.e("v_mov_b32 v1, s48")
        for j in range(20): g.e(f"v_mov_b32 v{8+j}, s{80+j}")
        g.e("v_mov_b32 v2, 0"); g.e("v_mov_b32 v3, s100")
        g.e("s_mov_b64 exec, 1")
        for j in range(5): g.e(f"global_store_dwordx4 v1, v[{8+4*j}:{11+4*j}], s[46:47] offset:{16*j}")
        if cfg.get("DBGT"):
            for j in range(10):
                g.e(f"global_atomic_umax v2, v{8+2*j}, s[50:51] offset:{4+4*j}")
            for k, j in enumerate((0, 2, 3, 7)):
                g.e(f"v_not_b32 v4, v{8+2*j}"); g.e(f"global_atomic_umax v2, v4, s[50:51] offset:{44+4*k}"); g.e("s_nop 2")
        g.e("s_cmp_eq_u32 s100, 0"); g.e("s_cbranch_scc1 L_end")
        g.e("global_atomic_add v2, v3, s[50:51]")
    g.lab("L_end")
    g.e("s_endpgm")
    L.append('.section .rodata,"a"'); L.append(".p2align 6"); L.append(f".amdhsa_kernel {NAME}")
    L.append("  .amdhsa_next_free_vgpr 256"); L.append("  .amdhsa_next_free_sgpr 102"); L.append("  .amdhsa_accum_offset 256")
    L.append("  .amdhsa_group_segment_fixed_size 0"); L.append("  .amdhsa_kernarg_size 112"); L.append("  .amdhsa_user_sgpr_count 2")
    L.append("  .amdhsa_user_sgpr_kernarg_segment_ptr 1"); L.append("  .amdhsa_system_sgpr_workgroup_id_x 1"); L.append(".end_amdhsa_kernel")
    return "\n".join(L) + "\n"

class Cfg(dict):
    def __getitem__(s, k):
        if k == "WPOS":
            w0, w1, wb = dict.__getitem__(s, "W0"), dict.__getitem__(s, "W1"), dict.__getitem__(s, "WB")
            if wb: return lambda i: w0 + (i // wb) * (w1 - w0) // max(1, (17 // wb))
            return lambda i: w0 + i * (w1 - w0) // 17
        return dict.__getitem__(s, k)
DEF = dict(HOLD=0, DBGT=0, PT=0, FL=1, AT=0, TS=0, DG=0, D=5, BUD=400, GAP=2, KH=22, KQ=24, M=36, W0=8, W1=30, WB=0, CLF=11, CSN=18, TML=20, CMP=22, TPL=26, CPK=28, stamps=0, verbose=0)
_gen = gen
def gen(cfg): return _gen(Cfg(cfg))
if __name__ == "__main__":
    import build
    out = sys.argv[1]
    cfg = dict(DEF)
    for a in sys.argv[2:]:
        k, v = a.split("="); cfg[k] = int(v)
    open(out, "w").write(gen(cfg))
    build.build(out)
    print("lds", LDS_BYTES)
```
